```python
import torch

def _softmax(x, axis=-1):
    return torch.softmax(x, dim=axis)
def _gelu(x):
    return torch.nn.functional.gelu(x, approximate="tanh")
def _silu(x):
    return torch.nn.functional.silu(x)
def _sigmoid(x):
    return torch.sigmoid(x)
def _layernorm(x, axis=-1, eps=1e-5):
    m = x.mean(dim=axis, keepdim=True)
    v = x.var(dim=axis, keepdim=True, unbiased=False)
    return (x - m) / torch.sqrt(v + eps)
def _scatter_add(tgt, idx, src, axis=0):
    return tgt.clone().index_add_(axis, idx, src)
def _segment_sum(src, seg, n):
    out = torch.zeros((n,) + src.shape[1:], dtype=src.dtype)
    return out.index_add_(0, seg, src)
def _pad(x, pw):
    flat = tuple(v for pair in reversed(pw) for v in pair)
    return torch.nn.functional.pad(x, flat)

kernel_name = 'parallel_sum__mha_block_cached__dense_activation_gelu__decode'

def setup_inputs():

    _w = (lambda a: (lambda t: t.to(torch.bfloat16) if t.is_floating_point() else t)(torch.as_tensor(a)))
    def _A_setup():
        B, Sq, D = 1, 1, 576
        H, Sk, Dh = 32, 32768, 128
        return {
            "x": _w((lambda *s: torch.randn(*s, dtype=torch.bfloat16) * 0.05)(B, Sq, D)),
            "k_cache": _w((lambda *s: torch.randn(*s, dtype=torch.bfloat16) * 3.2)(B, H, Sk, Dh)),
            "v_cache": _w((lambda *s: torch.randn(*s, dtype=torch.bfloat16) * 0.8)(B, H, Sk, Dh)),
            "wq": _w((lambda *s: torch.randn(*s, dtype=torch.bfloat16) * 3.2)(D, H * Dh) * (D ** -0.5)),
            "wo": _w((lambda *s: torch.randn(*s, dtype=torch.bfloat16) * 0.8)(H * Dh, D) * ((H * Dh) ** -0.5)),
        }
    _A_in = _A_setup()

    def _B_setup():
        B, S, D, F = 1, 1, 576, 4608
        return {
            "x": _w((lambda *s: torch.randn(*s, dtype=torch.bfloat16) * 0.05)(B, S, D)),
            "w1": _w((lambda *s: torch.randn(*s, dtype=torch.bfloat16) * 3.2)(D, F) * (D ** -0.5)),
            "b1": _w((lambda *s: torch.randn(*s, dtype=torch.bfloat16) * 3.2)(F) * 0.01),
            "w2": _w((lambda *s: torch.randn(*s, dtype=torch.bfloat16) * 0.4)(F, D) * (F ** -0.5)),
            "b2": _w((lambda *s: torch.randn(*s, dtype=torch.bfloat16) * 0.4)(D) * 0.01),
        }
    _B_in = _B_setup()

    return {
        "A_x": _A_in["x"],
        "A_k_cache": _A_in["k_cache"],
        "A_v_cache": _A_in["v_cache"],
        "A_wq": _A_in["wq"],
        "A_wo": _A_in["wo"],
        "B_x": _B_in["x"],
        "B_w1": _B_in["w1"],
        "B_b1": _B_in["b1"],
        "B_w2": _B_in["w2"],
        "B_b2": _B_in["b2"],
    }

def reference(A_x, A_k_cache, A_v_cache, A_wq, A_wo, B_x, B_w1, B_b1, B_w2, B_b2):
    def _A_ref(x, k_cache, v_cache, wq, wo):
        B, Sq, D = x.shape
        H, Dh = 32, 128
        q = (lambda x, *d: x.permute(*d))((x @ wq).reshape(B, Sq, H, Dh), 0, 2, 1, 3)
        scores = torch.einsum("bhqd,bhkd->bhqk", q, k_cache) * (Dh ** -0.5)
        p = _softmax(scores, axis=-1)
        o = torch.einsum("bhqk,bhkd->bhqd", p, v_cache)
        return (lambda x, *d: x.permute(*d))(o, 0, 2, 1, 3).reshape(B, Sq, H * Dh) @ wo

    def _B_ref(x, w1, b1, w2, b2):
        h = torch.einsum("bsd,df->bsf", x, w1) + b1
        h = _gelu(h)
        return torch.einsum("bsf,fd->bsd", h, w2) + b2

    x = A_x
    xn = _layernorm(x, axis=-1)
    return x + _A_ref(xn, A_k_cache, A_v_cache, A_wq, A_wo) + _B_ref(xn, B_w1, B_b1, B_w2, B_b2)
```

```python
import sys

NAME = "parallel_sum__mha_block_cached__dense_activation_gelu__decode"

WS_EP = 0
WS_SX = 0x1000
WS_QX = 0x10000
WS_HX = 0x50000
WS_OX = 0xD0000
WS_YA = 0x150000
WS_YB = 0x1E0000
WS_DBG = 0x280000
WS_SIZE = 0x300000

L_SC = 0
L_XR = 8192
L_QB = 10496
L_MS = 10752
L_FL = 10768
L_SCL = 10784
L_HR = 10816
L_FN = 10944
L_RP = 11072
LDS_BYTES = 86016

TAG_A = 0x9E3779B9
TAG_B = 0x7F4A7C15
LOG2E = 0x3FB8AA3B
SCALE = 0x3DB504F3

S_X, S_K, S_V, S_WQ, S_WO, S_W1, S_B1, S_W2, S_B2, S_OUT, S_DBG, S_WS = 4, 6, 8, 10, 12, 16, 18, 20, 22, 24, 26, 28
S_EP = 30
S_CUR = 32
S_SOFF, S_CNT, S_HB, S_IT = 36, 37, 38, 39
S_A = 40
S_B = 44
S_W = 48
S_WAVE, S_HEAD, S_SPL, S_SLOT = 52, 53, 54, 55
S_T0, S_T1 = 58, 59
S_ODD, S_BIT1 = 60, 62
S_SCALE, S_L2E = 64, 65
S_TAGA, S_TAGB = 66, 67
S_RED = 68
S_T2, S_T3 = 70, 71
S_BYTE = 72
S_ROW, S_POS = 73, 74
S_TS = 76
S_SPIN = 78
SPIN_CAP = 1 << 21
S_EX = 84

W = f"s[{S_W}:{S_W + 3}]"
A = f"s[{S_A}:{S_A + 3}]"
B = f"s[{S_B}:{S_B + 3}]"


class Gen:
    RING = 32
    D = 16

    def __init__(self, LA=5, waits="5", rot=256, w_flags="nt", stamps=False, pre_waits=6, pre=32, twist=0,
                 boost=0, boost_waits="5", xlocal=False, o_sleep=4, skip=""):
        self.LA, self.rot, self.w_flags, self.stamps, self.skip = LA, rot, w_flags, stamps, skip
        self.waits = [int(c, 16) for c in waits]
        self.boost, self.boost_waits = boost, [int(c, 16) for c in boost_waits]
        self.pre_n, self.pre, self.twist, self.xlocal, self.o_sleep = pre_waits, pre, twist, xlocal, o_sleep
        assert pre in (16, 32, 48) and all(2 <= n <= LA for n in self.waits + self.boost_waits) and LA < self.D
        self.L = []

    def a(self, s):
        self.L.append(s)

    def c(self, s):
        self.L.append("; " + s)

    def srd(self, r, p, size):
        self.a(f"s_mov_b32 s{r}, s{p}")
        self.a(f"s_and_b32 s{r + 1}, s{p + 1}, 0xffff")
        self.a(f"s_mov_b32 s{r + 2}, {size:#x}")
        self.a(f"s_mov_b32 s{r + 3}, 0x20000")

    def set_exec(self, lo, hi):
        self.a(f"s_mov_b32 exec_lo, {lo:#x}")
        self.a(f"s_mov_b32 exec_hi, {hi:#x}")

    def stamp(self, idx):
        if not self.stamps:
            return
        self.a(f"s_memrealtime s[{S_TS}:{S_TS + 1}]")
        self.a("s_waitcnt lgkmcnt(0)")
        self.a(f"v_writelane_b32 v250, s{S_TS}, {idx}")

    def stamp_flush(self):
        if not self.stamps:
            return
        a = self.a
        a("s_mov_b64 exec, -1")
        a(f"s_mul_i32 s{S_TS}, s2, 5")
        a(f"s_add_u32 s{S_TS}, s{S_TS}, s{S_WAVE}")
        a(f"s_lshl_b32 s{S_TS}, s{S_TS}, 6")
        a(f"s_add_u32 s{S_TS}, s{S_TS}, {WS_DBG:#x}")
        a("v_lshlrev_b32 v251, 2, v0")
        a("s_mov_b64 exec, 0xffff")
        a(f"buffer_store_dword v250, v251, {W}, s{S_TS} offen")

    def retry(self, label, sleep=0):
        if sleep:
            self.a(f"s_sleep {sleep}")
        self.a(f"s_add_u32 s{S_SPIN}, s{S_SPIN}, 1")
        self.a(f"s_cmp_lt_u32 s{S_SPIN}, {SPIN_CAP:#x}")
        self.a(f"s_cbranch_scc1 {label}")

    def allreduce(self, op, v, t):
        a = self.a
        for r in (8, 4, 2, 1):
            a("s_nop 1")
            a(f"{op}_dpp v{v}, v{v}, v{v} row_ror:{r} row_mask:0xf bank_mask:0xf")
        for sw in ("v_permlane16_swap_b32", "v_permlane32_swap_b32"):
            a(f"v_mov_b32 v{t}, v{v}")
            a("s_nop 1")
            a(f"{sw} v{v}, v{t}")
            a(f"{op} v{v}, v{v}, v{t}")

    def quad_col_reduce(self, vs, ts):
        a = self.a
        for r in (4, 8):
            for v in vs:
                a(f"v_add_f32_dpp v{v}, v{v}, v{v} row_ror:{r} row_mask:0xf bank_mask:0xf")
        for sw in ("v_permlane16_swap_b32", "v_permlane32_swap_b32"):
            for v, t in zip(vs, ts):
                a(f"v_mov_b32 v{t}, v{v}")
            for v, t in zip(vs, ts):
                a(f"{sw} v{v}, v{t}")
            for v, t in zip(vs, ts):
                a(f"v_add_f32 v{v}, v{v}, v{t}")

    def rbf(self, v):
        self.a(f"v_cvt_pk_bf16_f32 v{v}, v{v}, v{v}")
        self.a(f"v_and_b32 v{v}, 0xffff0000, v{v}")

    def masks(self, m0, t0, t1):
        a = self.a
        a(f"v_and_b32 v{t0}, 1, v0")
        a(f"v_lshlrev_b32 v{t0}, 4, v{t0}")
        a(f"v_mov_b32 v{t1}, 0xffff")
        a(f"v_lshlrev_b32 v{t0}, v{t0}, v{t1}")
        a(f"v_bfe_u32 v{t1}, v0, 1, 2")
        for i in range(4):
            a(f"v_cmp_eq_u32 vcc, {i}, v{t1}")
            a("s_nop 1")
            a(f"v_cndmask_b32 v{m0 + i}, 0, v{t0}, vcc")

    def a_frag(self, dst, src):
        for d in range(4):
            self.a(f"v_and_b32 v{dst + d}, v{src}, v{2 + d}")

    def mfma(self, acc, fa, fb, first=False):
        c = "0" if first else f"v[{acc}:{acc + 3}]"
        self.a(f"v_mfma_f32_16x16x32_bf16 v[{acc}:{acc + 3}], v[{fa}:{fa + 3}], v[{fb}:{fb + 3}], {c}")

    def lds_flag_wait(self, name, off, sleep):
        a = self.a
        a(f"v_mov_b32 v20, {off}")
        a(f"L_{name}_wait:")
        a("ds_read_b32 v21, v20")
        a("s_waitcnt lgkmcnt(0)")
        a(f"v_readfirstlane_b32 s{S_T0}, v21")
        a(f"s_cmp_eq_u32 s{S_T0}, 1")
        a(f"s_cbranch_scc1 L_{name}_ok")
        self.retry(f"L_{name}_wait", sleep)
        a(f"L_{name}_ok:")

    def lds_flag_set(self, off):
        self.a(f"v_mov_b32 v20, {off}")
        self.a("v_mov_b32 v21, 1")
        self.a("ds_write_b32 v20, v21")

    def load_tags(self):
        self.a(f"s_add_u32 s{S_TAGA}, s{S_EP}, {TAG_A:#x}")
        self.a(f"s_add_u32 s{S_TAGB}, s{S_EP + 1}, {TAG_B:#x}")

    def tag_bytes(self, t0):
        self.a(f"s_mov_b32 s{S_BYTE}, 0xff")
        for i in range(4):
            self.a(f"v_lshrrev_b32_e64 v{t0 + i}, {8 * i}, s{S_TAGA}")

    def tag_insert(self, r, t0):
        for i in range(4):
            self.a(f"v_bfi_b32 v{r + i}, s{S_BYTE}, v{t0 + i}, v{r + i}")

    def tag_consts(self):
        self.a(f"s_mov_b32 s{S_T2}, 0x0c0c0400")
        self.a(f"s_mov_b32 s{S_T3}, 0x04000c0c")

    def tag_check(self, granules, acc, t0, t1, quad=True):
        a = self.a
        for k, r in enumerate(granules):
            a(f"v_perm_b32 v{t0}, v{r + 1}, v{r}, s{S_T2}")
            a(f"v_perm_b32 v{t1}, v{r + 3}, v{r + 2}, s{S_T3}")
            a(f"v_or_b32 v{t0}, v{t0}, v{t1}")
            if k == 0:
                a(f"v_xor_b32 v{acc}, s{S_TAGA}, v{t0}")
            else:
                a(f"v_xor_b32 v{t0}, s{S_TAGA}, v{t0}")
                a(f"v_or_b32 v{acc}, v{acc}, v{t0}")
        if quad:
            for qp in ("[1,0,3,2]", "[2,3,0,1]"):
                a("s_nop 1")
                a(f"v_or_b32_dpp v{acc}, v{acc}, v{acc} quad_perm:{qp} row_mask:0xf bank_mask:0xf")
        a(f"v_cmp_ne_u32 vcc, 0, v{acc}")

    def tag_strip(self, lo, hi):
        for r in range(lo, hi):
            self.a(f"v_and_b32 v{r}, 0xffffff00, v{r}")

    def frag_store_offset(self, dst, shift, t):
        a = self.a
        a(f"v_bfe_u32 v{dst}, v0, 1, 3")
        a(f"v_lshlrev_b32 v{dst}, {shift}, v{dst}")
        a(f"v_and_b32 v{t}, 1, v0")
        a(f"v_lshl_add_u32 v{dst}, v{t}, 5, v{dst}")
        a(f"v_and_b32 v{t}, 16, v0")
        a(f"v_add_u32 v{dst}, v{dst}, v{t}")

    def slot(self, n):
        if self.D <= n < self.pre:
            return 96 + 4 * (n - self.D)
        return self.RING + 4 * (n % self.D)

    def issue(self, n, r=None):
        a = self.a
        if r is None:
            r = self.RING + 4 * (n % self.D)
        a(f"buffer_load_dwordx4 v[{r}:{r + 3}], v1, s[{S_CUR}:{S_CUR + 3}], s{S_SOFF} offen offset:{(n % 4) * 1024} nt")
        if n % 4 == 3:
            if self.twist:
                a(f"s_add_u32 s{S_ROW}, s{S_ROW}, 0x20000")
                a(f"s_and_b32 s{S_ROW}, s{S_ROW}, 0x7e0000")
                a(f"s_add_u32 s{S_POS}, s{S_POS}, {self.twist * 4096:#x}")
                a(f"s_and_b32 s{S_POS}, s{S_POS}, 0x1f000")
                a(f"s_or_b32 s{S_SOFF}, s{S_ROW}, s{S_POS}")
            else:
                a(f"s_add_u32 s{S_SOFF}, s{S_SOFF}, 0x20000")
                a(f"s_and_b32 s{S_SOFF}, s{S_SOFF}, 0x7fffff")
            a(f"s_or_b32 s{S_SOFF}, s{S_SOFF}, s{S_HB}")
            a(f"s_add_u32 s{S_CNT}, s{S_CNT}, 1")
            a(f"s_cmp_eq_u32 s{S_CNT}, 64")
            a(f"s_cselect_b32 s{S_CUR}, s{S_V}, s{S_CUR}")
            a(f"s_cselect_b32 s{S_CUR + 1}, s{S_V + 1}, s{S_CUR + 1}")

    def k_consume(self, j, r=None):
        a = self.a
        if r is None:
            r = self.RING + 4 * j
        p = 12 + j % 4
        a(f"v_dot2_f32_bf16 v{p}, v{r}, v6, 0")
        for d in range(1, 4):
            a(f"v_dot2_f32_bf16 v{p}, v{r + d}, v{6 + d}, v{p}")
        if j % 4 == 3:
            t = 16 + j // 4
            a("v_add_f32_dpp v12, v12, v12 row_ror:8 row_mask:0xf bank_mask:0x3")
            a("v_add_f32_dpp v12, v14, v14 row_ror:8 row_mask:0xf bank_mask:0xc")
            a("v_add_f32_dpp v13, v13, v13 row_ror:8 row_mask:0xf bank_mask:0x3")
            a("v_add_f32_dpp v13, v15, v15 row_ror:8 row_mask:0xf bank_mask:0xc")
            a(f"v_add_f32_dpp v{t}, v12, v12 row_shl:4 row_mask:0xf bank_mask:0x5")
            a("s_nop 0")
            a(f"v_add_f32_dpp v{t}, v13, v13 row_shr:4 row_mask:0xf bank_mask:0xa")
        if j == self.D - 1:
            qp1 = "quad_perm:[1,0,3,2] row_mask:0xf bank_mask:0xf"
            qp2 = "quad_perm:[2,3,0,1] row_mask:0xf bank_mask:0xf"
            for t in range(16, 20):
                a(f"v_add_f32_dpp v{t}, v{t}, v{t} {qp1}")
            a(f"v_cndmask_b32 v16, v16, v17, s[{S_ODD}:{S_ODD + 1}]")
            a(f"v_cndmask_b32 v18, v18, v19, s[{S_ODD}:{S_ODD + 1}]")
            a("s_nop 0")
            a(f"v_add_f32_dpp v16, v16, v16 {qp2}")
            a(f"v_add_f32_dpp v18, v18, v18 {qp2}")
            a(f"v_cndmask_b32 v20, v16, v18, s[{S_BIT1}:{S_BIT1 + 1}]")
            self.rbf(20)
            a(f"v_mul_f32 v20, s{S_SCALE}, v20")
            self.rbf(20)
            a("v_max_f32 v10, v10, v20")
            a("ds_write_b16_d16_hi v11, v20")
            a("v_add_u32 v11, 128, v11")

    def v_softmax(self):
        a = self.a
        a("s_waitcnt lgkmcnt(0)")
        a(f"v_fma_f32 v20, v245, s{S_L2E}, v23")
        a("v_exp_f32 v20, v20")
        a("s_nop 0")
        a("v_cvt_pk_bf16_f32 v241, v20, v20")

    def v_consume(self, j):
        a = self.a
        src = 4 * (j % 4) + j // 4
        for d in range(4):
            a(f"v_and_b32_dpp v{28 + d}, v241, v{2 + d} row_newbcast:{src} row_mask:0xf bank_mask:0xf")
        a("s_nop 1")
        self.mfma(24, 28, self.RING + 4 * j)

    def v_loop(self, label, waits, upto):
        a = self.a
        a(f"{label}:")
        self.v_softmax()
        for j in range(self.D):
            a(f"s_waitcnt vmcnt({waits[j % len(waits)] - 1})")
            self.issue(j + self.LA)
            self.v_consume(j)
            if j == 8:
                a("ds_read_u16_d16_hi v245, v22")
                a("v_add_u32 v22, 128, v22")
        a(f"s_add_u32 s{S_IT}, s{S_IT}, 1")
        a(f"s_cmp_lt_u32 s{S_IT}, {upto}")
        a(f"s_cbranch_scc1 {label}")

    def streamer(self):
        a, c, D, LA, pre = self.a, self.c, self.D, self.LA, self.pre
        c("---- streaming waves: K pass (scores), V pass (weighted sum) ----")
        a("v_lshlrev_b32 v1, 4, v0")
        a(f"s_lshl_b32 s{S_HB}, s{S_HEAD}, 23")
        a(f"s_lshl_b32 s{S_T0}, s{S_SPL}, 2")
        a(f"s_add_u32 s{S_T0}, s{S_T0}, s{S_WAVE}")
        a(f"s_lshl_b32 s{S_POS}, s{S_T0}, 12")
        a(f"s_mul_i32 s{S_ROW}, s{S_HEAD}, {self.rot * 1024}")
        a(f"s_and_b32 s{S_ROW}, s{S_ROW}, 0x7e0000")
        a(f"s_or_b32 s{S_SOFF}, s{S_ROW}, s{S_POS}")
        a(f"s_or_b32 s{S_SOFF}, s{S_SOFF}, s{S_HB}")
        a(f"s_mov_b32 s{S_CNT}, 0")
        c("s79: destination of this wave's o partial")
        a(f"s_lshl_b32 s79, s{S_T0}, 6")
        a(f"s_lshl_b32 s{S_T1}, s{S_HEAD}, 14")
        a(f"s_add_u32 s79, s79, s{S_T1}")
        a(f"s_add_u32 s79, s79, {WS_OX:#x}")
        a("s_waitcnt lgkmcnt(0)")
        self.srd(S_CUR, S_K, 0x10000000)
        a(f"s_and_b32 s{S_V + 1}, s{S_V + 1}, 0xffff")
        for n in range(self.pre_n):
            self.issue(n, self.slot(n))
        a(f"s_load_dwordx2 s[{S_EP}:{S_EP + 1}], s[{S_WS}:{S_WS + 1}], {WS_EP}")
        a("s_barrier")
        self.srd(S_W, S_WS, WS_SIZE)
        self.masks(2, 20, 21)
        a(f"s_mov_b32 s{S_ODD}, 0xaaaaaaaa")
        a(f"s_mov_b32 s{S_ODD + 1}, 0xaaaaaaaa")
        a(f"s_mov_b32 s{S_BIT1}, 0xcccccccc")
        a(f"s_mov_b32 s{S_BIT1 + 1}, 0xcccccccc")
        a(f"s_mov_b32 s{S_SCALE}, {SCALE:#x}")
        a(f"s_mov_b32 s{S_L2E}, {LOG2E:#x}")
        a("v_mov_b32 v10, 0xff800000")
        a(f"s_lshl_b32 s{S_T0}, s{S_WAVE}, 11")
        a(f"s_add_u32 s{S_T0}, s{S_T0}, {L_SC}")
        a(f"v_lshl_add_u32 v11, v0, 1, s{S_T0}")
        a("v_mov_b32 v22, v11")
        a("v_and_b32 v23, 15, v0")
        a("v_lshlrev_b32 v23, 4, v23")
        a("v_mov_b32 v245, 0")
        for i in range(24, 28):
            a(f"v_mov_b32 v{i}, 0")
        self.frag_store_offset(243, 11, 20)
        for n in range(self.pre_n, pre):
            a(f"s_waitcnt vmcnt({self.pre_n - 1})")
            self.issue(n, self.slot(n))
        self.stamp(1)
        self.lds_flag_wait("q", L_FL, 1)
        a(f"ds_read_b128 v[6:9], v23 offset:{L_QB}")
        self.load_tags()
        a("s_waitcnt lgkmcnt(0)")
        self.stamp(2)
        c("first K bodies: drain the prefetched loads")
        nre = min(LA, self.waits[0])
        done = 0
        for k in range(pre):
            a(f"s_waitcnt vmcnt({pre - 1 + done - k})")
            self.k_consume(k % D, self.slot(k))
            if k < nre or (k >= pre - (LA - nre)):
                self.issue(pre + done)
                done += 1
        assert done == LA
        a(f"s_mov_b32 s{S_IT}, {pre // D}")
        a("L_kloop:")
        for j in range(D):
            a(f"s_waitcnt vmcnt({self.waits[j % len(self.waits)] - 1})")
            self.issue(j + LA)
            self.k_consume(j)
        a(f"s_add_u32 s{S_IT}, s{S_IT}, 1")
        a(f"s_cmp_lt_u32 s{S_IT}, 16")
        a("s_cbranch_scc1 L_kloop")
        self.stamp(3)
        c("wave maximum of the scores")
        a("ds_read_u16_d16_hi v245, v22")
        a("v_add_u32 v22, 128, v22")
        self.allreduce("v_max_f32", 10, 20)
        a(f"v_mul_f32_e64 v23, -v10, s{S_L2E}")
        a("v_min_u32 v10, -2, v10")
        a(f"s_lshl_b32 s{S_T0}, s{S_WAVE}, 2")
        a(f"v_mov_b32 v240, s{S_T0}")
        a("s_mov_b64 exec, 1")
        a(f"ds_write_b32 v240, v10 offset:{L_MS}")
        a("s_mov_b64 exec, -1")
        a(f"s_mov_b32 s{S_IT}, 0")
        nb = max(self.boost - 1, 0)
        self.v_loop("L_vloop", self.waits, 15 - nb)
        if nb:
            self.v_loop("L_vboost", self.boost_waits, 15)
        c("last V body")
        lw = self.boost_waits if self.boost else self.waits
        self.v_softmax()
        for j in range(D):
            if j + LA < D:
                a(f"s_waitcnt vmcnt({lw[j % len(lw)] - 1})")
                self.issue(j + LA)
            else:
                a(f"s_waitcnt vmcnt({D - 1 - j})")
            self.v_consume(j)
            if j == 0:
                self.lds_flag_set(L_FL + 8)
                self.lds_flag_wait("scale", L_FL + 4, 2)
                a(f"ds_read_b32 v10, v240 offset:{L_SCL}")
                self.tag_bytes(6)
                self.tag_consts()
                c("v240 / s80..s83: gather offsets of the final reduction")
                a(f"s_lshl_b32 s{S_T1}, s{S_WAVE}, 10")
                a(f"v_lshl_add_u32 v240, v0, 4, s{S_T1}")
                a(f"s_lshl_b32 s{S_T1}, s{S_RED}, 14")
                a(f"s_add_u32 s80, s{S_T1}, {WS_YA:#x}")
                for i in range(1, 4):
                    a(f"s_add_u32 s{80 + i}, s80, {i * 4096}")
                a("s_waitcnt lgkmcnt(0)")
        self.stamp(4)
        c("publish this wave's normalised partial o with this launch's tag in the low bytes")
        a("s_mov_b32 exec_hi, 0")
        a("s_nop 6")
        for i in range(24, 28):
            a(f"v_mul_f32 v{i}, v10, v{i}")
        self.tag_insert(24, 6)
        a(f"buffer_store_dwordx4 v[24:27], v243, {W}, s79 offen sc1")
        a("s_mov_b64 exec, -1")
        self.stamp(7)
        a(f"s_cmp_lt_u32 s{S_RED}, 36")
        a("s_cbranch_scc0 L_finish")
        c("---- final reduction of 16 output columns over all 256 workgroups ----")
        a("L_gather:")
        for i in range(4):
            a(f"buffer_load_dwordx4 v[{40 + 4 * i}:{43 + 4 * i}], v240, {W}, s{80 + i} offen sc1")
        a("s_waitcnt vmcnt(0)")
        self.tag_check([40, 44, 48, 52], 20, 21, 22)
        a("s_and_b64 exec, exec, vcc")
        a("s_cbranch_execz L_gathered")
        self.retry("L_gather", self.o_sleep)
        a("L_gathered:")
        a("s_mov_b64 exec, -1")
        self.stamp(8)
        self.tag_strip(40, 56)
        for i in range(4):
            a(f"v_add_f32 v{40 + i}, v{40 + i}, v{44 + i}")
        for i in range(4):
            a(f"v_add_f32 v{48 + i}, v{48 + i}, v{52 + i}")
        for i in range(4):
            a(f"v_add_f32 v{64 + i}, v{40 + i}, v{48 + i}")
        self.quad_col_reduce([64, 65, 66, 67], [60, 61, 62, 63])
        a(f"s_lshl_b32 s{S_T0}, s{S_WAVE}, 6")
        a(f"v_lshl_add_u32 v20, v0, 4, s{S_T0}")
        a("s_mov_b64 exec, 15")
        a(f"ds_write_b128 v20, v[64:67] offset:{L_RP}")
        a("s_waitcnt lgkmcnt(0)")
        a("s_barrier")
        a(f"s_cmp_eq_u32 s{S_WAVE}, 0")
        a("s_cbranch_scc0 L_finish")
        for w in range(4):
            a(f"ds_read_b128 v[{32 + 4 * w}:{35 + 4 * w}], v20 offset:{L_RP + w * 64}")
        a(f"ds_read_b128 v[48:51], v20 offset:{L_FN}")
        a(f"ds_read_b128 v[52:55], v20 offset:{L_FN + 64}")
        self.srd(S_A, S_OUT, 1152)
        a(f"s_lshl_b32 s{S_T0}, s{S_RED}, 5")
        a(f"v_lshl_add_u32 v21, v0, 3, s{S_T0}")
        a("s_waitcnt lgkmcnt(2)")
        for w in range(1, 4):
            for i in range(4):
                a(f"v_add_f32 v{32 + i}, v{32 + i}, v{32 + 4 * w + i}")
        for i in range(4):
            self.rbf(32 + i)
        a("s_waitcnt lgkmcnt(0)")
        for i in range(4):
            a(f"v_add_f32 v{32 + i}, v{48 + i}, v{32 + i}")
        for i in range(4):
            self.rbf(32 + i)
        for i in range(4):
            a(f"v_add_f32 v{32 + i}, v{32 + i}, v{52 + i}")
        a("v_cvt_pk_bf16_f32 v32, v32, v33")
        a("v_cvt_pk_bf16_f32 v33, v34, v35")
        a(f"buffer_store_dwordx2 v[32:33], v21, {A}, 0 offen")
        a(f"s_cmp_eq_u32 s{S_RED}, 0")
        a("s_cbranch_scc0 L_finish")
        c("every workgroup has consumed the epoch words: advance them")
        a("s_mov_b64 exec, 1")
        a(f"v_mov_b32 v22, s{S_TAGA}")
        a(f"v_mov_b32 v23, s{S_TAGB}")
        a(f"buffer_store_dwordx2 v[22:23], v20, {W}, 0 offen offset:{WS_EP}")
        a("L_finish:")
        self.stamp(9)
        self.stamp_flush()
        a("s_endpgm")

    def pair_publish(self, acc, soff, imm=0):
        a = self.a
        a(f"v_cndmask_b32 v92, v{acc + 2}, v{acc}, s[{S_ODD}:{S_ODD + 1}]")
        a(f"v_cndmask_b32 v94, v{acc + 3}, v{acc + 1}, s[{S_ODD}:{S_ODD + 1}]")
        a(f"buffer_store_dwordx4 v[92:95], v6, {W}, s{soff} offen offset:{imm} sc1")

    def pair_gather(self, name, srcs, sleep):
        a = self.a
        a(f"s_mov_b64 s[{S_EX}:{S_EX + 1}], exec")
        a(f"L_{name}_poll:")
        for s, (soff, imm) in enumerate(srcs):
            a(f"buffer_load_dwordx4 v[{20 + 4 * s}:{23 + 4 * s}], v6, {W}, s{soff} offen offset:{imm} sc1")
        a("s_waitcnt vmcnt(0)")
        for t, (first, tag) in enumerate(((21, S_TAGA), (23, S_TAGB))):
            rs = [first + 4 * s for s in range(8)]
            lo, hi = 52 + 2 * t, 53 + 2 * t
            for op, d in (("min", lo), ("max", hi)):
                a(f"v_{op}3_u32 v{d}, v{rs[0]}, v{rs[1]}, v{rs[2]}")
                a(f"v_{op}3_u32 v{d}, v{d}, v{rs[3]}, v{rs[4]}")
                a(f"v_{op}3_u32 v{d}, v{d}, v{rs[5]}, v{rs[6]}")
                a(f"v_{op}_u32 v{d}, v{d}, v{rs[7]}")
                a(f"v_xor_b32 v{d}, s{tag}, v{d}")
        a("v_or3_b32 v52, v52, v53, v54")
        a("v_or_b32 v52, v52, v55")
        a("v_cmp_ne_u32 vcc, 0, v52")
        a("s_and_b64 exec, exec, vcc")
        a(f"s_cbranch_execz L_{name}_done")
        self.retry(f"L_{name}_poll", sleep)
        a(f"L_{name}_done:")
        a(f"s_mov_b64 exec, s[{S_EX}:{S_EX + 1}]")
        for s in range(1, 8):
            a(f"v_add_f32 v20, v20, v{20 + 4 * s}")
            a(f"v_add_f32 v22, v22, v{22 + 4 * s}")

    def row_frag_loads(self, rows, voff, dst):
        a = self.a
        for j in range(rows):
            for b in range(4):
                r = dst + 4 * (5 * j + b)
                a(f"buffer_load_dwordx4 v[{r}:{r + 3}], v{voff}, {B}, s{S_T0} offen offset:{256 * b} {self.w_flags}")
            r = dst + 4 * (5 * j + 4)
            self.set_exec(0x00FF00FF, 0x00FF00FF)
            a(f"buffer_load_dwordx4 v[{r}:{r + 3}], v{voff}, {B}, s{S_T0} offen offset:1024 {self.w_flags}")
            a("s_mov_b64 exec, -1")
            if j < rows - 1:
                a(f"s_add_u32 s{S_T0}, s{S_T0}, 1152")

    def row_frag_project(self, rows, aval, src, base):
        a = self.a
        for j in range(rows):
            self.a_frag(84 + 4 * (j % 2), aval + j)
            a("s_nop 1")
            for b in range(5):
                self.mfma(40 + 4 * b, 84 + 4 * (j % 2), src + 4 * (5 * j + b), first=(j == 0))
        a(f"s_lshl_b32 s{S_T0}, s{S_SLOT}, 6")
        a(f"s_add_u32 s{S_T0}, s{S_T0}, {base:#x}")
        a("s_mov_b32 exec_hi, 0")
        a("s_nop 0")
        for b in range(5):
            self.tag_insert(40 + 4 * b, 12)
            if b == 4:
                a("s_mov_b32 exec_lo, 0x00ff00ff")
            a(f"buffer_store_dwordx4 v[{40 + 4 * b}:{43 + 4 * b}], v17, {W}, s{S_T0} offen sc1")
            if b < 4:
                a(f"s_add_u32 s{S_T0}, s{S_T0}, 0x20000")
        a("s_mov_b64 exec, -1")

    def gelu(self, v, t0, t1):
        a = self.a
        a(f"v_mul_f32 v{t0}, v{v}, v{v}")
        a(f"v_mul_f32 v{t0}, v{t0}, v{v}")
        a(f"v_mov_b32 v{t1}, v{v}")
        a(f"v_fmac_f32 v{t1}, 0x3d372713, v{t0}")
        a(f"v_mul_f32 v{t1}, 0xc0135761, v{t1}")
        a(f"v_exp_f32 v{t1}, v{t1}")
        a("s_nop 0")
        a(f"v_add_f32 v{t1}, 1.0, v{t1}")
        a(f"v_rcp_f32 v{t1}, v{t1}")
        a("s_nop 0")
        a(f"v_mul_f32 v{v}, v{v}, v{t1}")
        a(f"v_cvt_pk_bf16_f32 v{v}, v{v}, v{v}")

    def helper(self):
        a, c = self.a, self.c
        a("L_helper:")
        c("---- helper wave: layernorm, q / FFN projections and their exchanges, output projection ----")
        a("v_lshlrev_b32 v1, 2, v0")
        a("v_lshrrev_b32 v8, 4, v0")
        a("v_and_b32 v9, 15, v0")
        a("v_lshlrev_b32 v9, 4, v9")
        a("v_mul_u32_u24 v7, 147456, v8")
        a("v_add_u32 v7, v7, v9")
        a("v_mul_u32_u24 v16, 165888, v8")
        a("v_add_u32 v16, v16, v9")
        a(f"s_mul_i32 s{S_T0}, s{S_SPL}, 589824")
        a(f"s_lshl_b32 s{S_T1}, s{S_HEAD}, 8")
        a(f"s_add_u32 s{S_T0}, s{S_T0}, s{S_T1}")
        a(f"s_mul_i32 s79, s{S_SPL}, 663552")
        a(f"s_mul_i32 s{S_T1}, s{S_HEAD}, 288")
        a(f"s_add_u32 s79, s79, s{S_T1}")
        for i in range(4):
            a(f"v_mov_b32 v{20 + i}, -1")
            a(f"v_mov_b32 v{24 + i}, 0")
        a("s_mov_b64 exec, 1")
        a(f"ds_write_b128 v1, v[20:23] offset:{L_MS}")
        a(f"ds_write_b128 v1, v[24:27] offset:{L_FL}")
        a(f"ds_write_b64 v1, v[24:25] offset:{L_HR + 72}")
        a("s_mov_b64 exec, -1")
        a("s_waitcnt lgkmcnt(0)")
        self.srd(S_A, S_X, 1152)
        for i in range(5):
            a(f"buffer_load_dword v{10 + i}, v1, {A}, 0 offen offset:{256 * i}")
        self.srd(S_B, S_WQ, 4718592)
        for j in range(18):
            a(f"buffer_load_dwordx4 v[{96 + 4 * j}:{99 + 4 * j}], v7, {B}, s{S_T0} offen {self.w_flags}")
            if j < 17:
                a(f"s_add_u32 s{S_T0}, s{S_T0}, 8192")
        a("s_barrier")
        a(f"s_load_dwordx2 s[{S_EP}:{S_EP + 1}], s[{S_WS}:{S_WS + 1}], {WS_EP}")
        self.srd(S_B, S_W1, 5308416)
        a(f"s_mov_b32 s{S_T0}, s79")
        for j in range(18):
            a(f"buffer_load_dwordx4 v[{168 + 4 * j}:{171 + 4 * j}], v16, {B}, s{S_T0} offen {self.w_flags}")
            if j < 17:
                a(f"s_add_u32 s{S_T0}, s{S_T0}, 9216")
        self.srd(S_W, S_WS, WS_SIZE)
        self.masks(2, 20, 21)
        a(f"s_mov_b32 s{S_L2E}, {LOG2E:#x}")
        a(f"s_mov_b32 s{S_ODD}, -1")
        a(f"s_mov_b32 s{S_ODD + 1}, 0")
        a("v_lshlrev_b32 v6, 4, v0")
        a("v_lshlrev_b32 v54, 3, v0")
        a(f"s_mul_i32 s{S_T1}, s{S_SPL}, 288")
        a("v_mul_u32_u24 v55, 72, v8")
        a(f"v_add_u32 v55, s{S_T1}, v55")
        a("s_waitcnt vmcnt(36)")
        self.stamp(1)
        c("layernorm with the reference's bf16 rounding points")
        for i in range(5):
            a(f"v_lshlrev_b32 v{20 + 2 * i}, 16, v{10 + i}")
            a(f"v_and_b32 v{21 + 2 * i}, 0xffff0000, v{10 + i}")
        a("v_add_f32 v30, v20, v21")
        for i in range(22, 30):
            a(f"v_add_f32 v30, v30, v{i}")
        self.allreduce("v_add_f32", 30, 31)
        a("v_mul_f32 v32, 0x3ae38e39, v30")
        for i in range(10):
            a(f"v_sub_f32 v{40 + i}, v{20 + i}, v32")
        a(f"v_cndmask_b32 v48, 0, v48, s[{S_ODD}:{S_ODD + 1}]")
        a(f"v_cndmask_b32 v49, 0, v49, s[{S_ODD}:{S_ODD + 1}]")
        a("v_mul_f32 v30, v40, v40")
        for i in range(41, 50):
            a(f"v_fmac_f32 v30, v{i}, v{i}")
        self.allreduce("v_add_f32", 30, 31)
        a("v_mul_f32 v33, 0x3ae38e39, v30")
        self.rbf(32)
        self.rbf(33)
        a("v_add_f32 v33, 0x3727c5ac, v33")
        self.rbf(33)
        a("v_sqrt_f32 v33, v33")
        for i in range(10):
            a(f"v_sub_f32 v{40 + i}, v{20 + i}, v32")
        self.rbf(33)
        a("v_rcp_f32 v34, v33")
        for i in range(10):
            self.rbf(40 + i)
        for i in range(10):
            a(f"v_mul_f32 v{20 + i}, v{40 + i}, v34")
        for i in range(10):
            a(f"v_fma_f32 v{40 + i}, -v{20 + i}, v33, v{40 + i}")
        for i in range(10):
            a(f"v_fmac_f32 v{20 + i}, v{40 + i}, v34")
        for i in range(10):
            a(f"v_cvt_pk_bf16_f32 v{20 + i}, v{20 + i}, v{20 + i}")
        for i in range(4):
            a(f"ds_write_b64 v54, v[{20 + 2 * i}:{21 + 2 * i}] offset:{L_XR + 512 * i}")
        a("s_mov_b32 exec_hi, 0")
        a(f"ds_write_b64 v54, v[28:29] offset:{L_XR + 2048}")
        a("s_mov_b64 exec, -1")
        for t in range(9):
            a(f"ds_read_b64 v[{60 + 2 * t}:{61 + 2 * t}], v55 offset:{L_XR + 8 * t}")
        self.stamp(2)
        a("s_waitcnt lgkmcnt(0)")
        self.load_tags()
        c("partial q over rows 72*split .. 72*split+71")
        for j in range(18):
            self.a_frag(84, 60 + j)
            a(f"s_waitcnt vmcnt({35 - j})")
            a("s_nop 0")
            self.mfma(80, 84, 96 + 4 * j, first=(j == 0))
        a(f"v_mov_b32 v93, s{S_TAGA}")
        a(f"v_mov_b32 v95, s{S_TAGB}")
        a(f"s_lshl_b32 s{S_T0}, s{S_SLOT}, 10")
        a(f"s_add_u32 s{S_T0}, s{S_T0}, {WS_QX:#x}")
        a(f"s_lshl_b32 s80, s{S_HEAD}, 13")
        a(f"s_add_u32 s80, s80, {WS_QX:#x}")
        a("s_add_u32 s81, s80, 4096")
        a("s_nop 1")
        self.pair_publish(80, S_T0)
        self.stamp(3)
        c("the last 16 of the head group's 144 hidden columns")
        self.set_exec(0x00030003, 0x00030003)
        for j in range(18):
            a(f"buffer_load_dwordx4 v[{96 + 4 * j}:{99 + 4 * j}], v16, {B}, s79 offen offset:256 {self.w_flags}")
            if j < 17:
                a("s_add_u32 s79, s79, 9216")
        a("s_mov_b64 exec, -1")
        c("v18: first of the two columns this lane holds in the pair format")
        a("v_bfe_u32 v18, v0, 4, 1")
        a("v_lshlrev_b32 v18, 2, v18")
        a("v_lshrrev_b32 v19, 5, v0")
        a("v_lshl_add_u32 v18, v19, 1, v18")
        a("v_lshrrev_b32 v19, 1, v9")
        a("v_add_u32 v18, v18, v19")
        self.pair_gather("q", [(80 + s // 4, (s % 4) * 1024) for s in range(8)], 0)
        a("v_lshlrev_b32 v19, 1, v18")
        a("v_cvt_pk_bf16_f32 v22, v20, v22")
        a(f"ds_write_b32 v19, v22 offset:{L_QB}")
        self.lds_flag_set(L_FL)
        self.stamp(4)
        c("partial FFN pre-activations over the same rows")
        for j in range(18):
            self.a_frag(84, 60 + j)
            a("s_nop 1")
            self.mfma(80, 84, 168 + 4 * j, first=(j == 0))
            self.mfma(88, 84, 96 + 4 * j, first=(j == 0))
        a(f"s_lshl_b32 s{S_T0}, s{S_SLOT}, 11")
        a(f"s_add_u32 s{S_T0}, s{S_T0}, {WS_HX:#x}")
        a(f"s_lshl_b32 s80, s{S_HEAD}, 14")
        a(f"s_add_u32 s80, s80, {WS_HX:#x}")
        for i in range(1, 4):
            a(f"s_add_u32 s{80 + i}, s80, {4096 * i}")
        a("s_nop 1")
        self.pair_publish(80, S_T0)
        a("s_nop 1")
        self.set_exec(0x00030003, 0x00030003)
        self.pair_publish(88, S_T0, 1024)
        a("s_mov_b64 exec, -1")
        c("w2 rows of this workgroup's 18 hidden columns")
        self.srd(S_B, S_W2, 5308416)
        a("v_mul_u32_u24 v7, 5760, v8")
        a("v_add_u32 v7, v7, v9")
        a(f"s_mul_i32 s{S_T0}, s{S_SLOT}, 20736")
        self.row_frag_loads(5, 7, 96)
        self.srd(S_A, S_B1, 9216)
        self.frag_store_offset(17, 14, 19)
        self.tag_bytes(12)
        a(f"s_mul_i32 s79, s{S_SPL}, 18")
        a(f"v_subrev_u32 v18, s79, v18")
        a(f"s_mul_i32 s79, s{S_SLOT}, 36")
        a(f"s_mov_b32 s{S_IT}, 0")
        a("L_hpage:")
        a("v_cmp_gt_u32 vcc, 18, v18")
        a("s_and_b64 exec, exec, vcc")
        a("s_cbranch_execz L_hpage_next")
        a("v_lshlrev_b32 v19, 1, v18")
        a(f"buffer_load_dword v56, v19, {A}, s79 offen")
        self.pair_gather("h", [(80 + s // 2, (s % 2) * 2048) for s in range(8)], 8)
        self.rbf(20)
        self.rbf(22)
        a("v_lshlrev_b32 v21, 16, v56")
        a("v_and_b32 v23, 0xffff0000, v56")
        a("v_add_f32 v20, v20, v21")
        a("v_add_f32 v21, v22, v23")
        self.rbf(20)
        self.rbf(21)
        self.gelu(20, 22, 23)
        self.gelu(21, 22, 23)
        a("v_lshlrev_b32 v19, 2, v18")
        a(f"ds_write_b64 v19, v[20:21] offset:{L_HR}")
        a("L_hpage_next:")
        a("s_mov_b64 exec, -1")
        a("v_add_u32 v18, 128, v18")
        for i in range(4):
            a(f"s_add_u32 s{80 + i}, s{80 + i}, 1024")
        a(f"s_add_u32 s{S_IT}, s{S_IT}, 1")
        a(f"s_cmp_lt_u32 s{S_IT}, 2")
        a("s_cbranch_scc1 L_hpage")
        a("v_mul_u32_u24 v19, 20, v8")
        for j in range(5):
            a(f"ds_read_b32 v{60 + j}, v19 offset:{L_HR + 4 * j}")
        a("s_waitcnt vmcnt(0) lgkmcnt(0)")
        self.row_frag_project(5, 60, 96, WS_YB)
        self.stamp(5)
        c("wo rows of this workgroup's 16 attention columns")
        self.srd(S_B, S_WO, 4718592)
        a("v_mul_u32_u24 v7, 4608, v8")
        a("v_add_u32 v7, v7, v9")
        a(f"s_mul_i32 s{S_T0}, s{S_SLOT}, 18432")
        self.row_frag_loads(4, 7, 96)
        self.tag_consts()
        a(f"s_cmp_lt_u32 s{S_RED}, 36")
        a("s_cbranch_scc0 L_no_fin")
        c("reducer preparation: finish the FFN branch for 16 columns")
        a(f"s_lshl_b32 s80, s{S_RED}, 14")
        a(f"s_add_u32 s80, s80, {WS_YB:#x}")
        for i in range(1, 4):
            a(f"s_add_u32 s{80 + i}, s80, {4096 * i}")
        a("L_bwait:")
        for i in range(16):
            a(f"buffer_load_dwordx4 v[{176 + 4 * i}:{179 + 4 * i}], v6, {W}, s{80 + i // 4} offen offset:{(i % 4) * 1024} sc1")
        a("s_waitcnt vmcnt(0)")
        self.tag_check([176 + 4 * i for i in range(16)], 20, 21, 22)
        a("s_and_b64 exec, exec, vcc")
        a("s_cbranch_execz L_bdone")
        self.retry("L_bwait", 32)
        a("L_bdone:")
        a("s_mov_b64 exec, -1")
        self.srd(S_A, S_X, 1152)
        self.srd(S_B, S_B2, 1152)
        a(f"s_lshl_b32 s{S_T0}, s{S_RED}, 5")
        a("v_and_b32 v24, 3, v0")
        a("v_lshlrev_b32 v25, 3, v24")
        a(f"buffer_load_dwordx2 v[20:21], v25, {A}, s{S_T0} offen")
        a(f"buffer_load_dwordx2 v[22:23], v25, {B}, s{S_T0} offen")
        self.tag_strip(176, 240)
        for k in range(1, 16):
            for i in range(4):
                a(f"v_add_f32 v{176 + i}, v{176 + i}, v{176 + 4 * k + i}")
        self.quad_col_reduce([176, 177, 178, 179], [180, 181, 182, 183])
        for i in range(4):
            self.rbf(176 + i)
        a("s_waitcnt vmcnt(0)")
        for src, dst in ((20, 184), (22, 188)):
            a(f"v_lshlrev_b32 v{dst}, 16, v{src}")
            a(f"v_and_b32 v{dst + 1}, 0xffff0000, v{src}")
            a(f"v_lshlrev_b32 v{dst + 2}, 16, v{src + 1}")
            a(f"v_and_b32 v{dst + 3}, 0xffff0000, v{src + 1}")
        for i in range(4):
            a(f"v_add_f32 v{188 + i}, v{176 + i}, v{188 + i}")
        for i in range(4):
            self.rbf(188 + i)
        a("s_mov_b64 exec, 15")
        a(f"ds_write_b128 v6, v[184:187] offset:{L_FN}")
        a(f"ds_write_b128 v6, v[188:191] offset:{L_FN + 64}")
        a("s_mov_b64 exec, -1")
        a("L_no_fin:")
        self.stamp(6)
        c("softmax denominator: wait for the four wave maxima, then sum exp over the workgroup's scores")
        a("v_mov_b32 v24, 0")
        a("L_max_wait:")
        a(f"ds_read_b128 v[28:31], v24 offset:{L_MS}")
        a("s_waitcnt lgkmcnt(0)")
        a("v_max3_u32 v20, v28, v29, v30")
        a("v_max_u32 v20, v20, v31")
        a("v_cmp_eq_u32 vcc, -1, v20")
        a("s_and_b64 vcc, vcc, exec")
        a("s_cbranch_scc0 L_max_ok")
        self.retry("L_max_wait", 32)
        a("L_max_ok:")
        a("v_max3_f32 v32, v28, v29, v30")
        a("v_max_f32 v32, v32, v31")
        a(f"v_mul_f32_e64 v33, -v32, s{S_L2E}")
        a("v_mov_b32 v34, 0")
        a("v_mov_b32 v25, v6")
        a(f"s_mov_b32 s{S_IT}, 0")
        a("L_den:")
        a(f"ds_read_b128 v[36:39], v25 offset:{L_SC}")
        a("v_add_u32 v25, 1024, v25")
        a("s_waitcnt lgkmcnt(0)")
        for i in range(4):
            a(f"v_lshlrev_b32 v{40 + 2 * i}, 16, v{36 + i}")
            a(f"v_and_b32 v{41 + 2 * i}, 0xffff0000, v{36 + i}")
        for i in range(40, 48):
            a(f"v_fma_f32 v{i}, v{i}, s{S_L2E}, v33")
        for i in range(40, 48):
            a(f"v_exp_f32 v{i}, v{i}")
        a("s_nop 0")
        for i in range(40, 48):
            a(f"v_add_f32 v34, v34, v{i}")
        a(f"s_add_u32 s{S_IT}, s{S_IT}, 1")
        a(f"s_cmp_lt_u32 s{S_IT}, 8")
        a("s_cbranch_scc1 L_den")
        self.allreduce("v_add_f32", 34, 20)
        c("exchange {max, sum} inside the head and derive each wave's normalisation")
        a(f"v_mov_b32 v33, s{S_TAGA}")
        a(f"v_mov_b32 v35, s{S_TAGB}")
        a(f"s_lshl_b32 s{S_T0}, s{S_SLOT}, 4")
        a(f"s_add_u32 s{S_T0}, s{S_T0}, {WS_SX:#x}")
        a("s_mov_b64 exec, 1")
        a(f"buffer_store_dwordx4 v[32:35], v6, {W}, s{S_T0} offen sc1")
        a("s_mov_b64 exec, -1")
        a("v_and_b32 v25, 7, v0")
        a("v_lshlrev_b32 v25, 4, v25")
        a(f"s_lshl_b32 s{S_T0}, s{S_HEAD}, 7")
        a(f"s_add_u32 s{S_T0}, s{S_T0}, {WS_SX:#x}")
        a("L_swait:")
        a(f"buffer_load_dwordx4 v[40:43], v25, {W}, s{S_T0} offen sc1")
        a("s_waitcnt vmcnt(0)")
        a(f"v_xor_b32 v20, s{S_TAGA}, v41")
        a(f"v_xor_b32 v21, s{S_TAGB}, v43")
        a("v_or_b32 v20, v20, v21")
        a("v_cmp_ne_u32 vcc, 0, v20")
        a("s_and_b64 vcc, vcc, exec")
        a("s_cbranch_scc0 L_sdone")
        self.retry("L_swait", 32)
        a("L_sdone:")
        a("v_and_b32 v25, 3, v0")
        a("v_lshlrev_b32 v25, 2, v25")
        a(f"ds_read_b32 v45, v25 offset:{L_MS}")
        a("v_mov_b32 v44, v40")
        for r in (4, 2, 1):
            a("s_nop 1")
            a(f"v_max_f32_dpp v44, v44, v44 row_ror:{r} row_mask:0xf bank_mask:0xf")
        a("v_sub_f32 v40, v40, v44")
        a(f"v_mul_f32 v40, s{S_L2E}, v40")
        a("v_exp_f32 v40, v40")
        a("s_nop 0")
        a("v_mul_f32 v42, v42, v40")
        for r in (4, 2, 1):
            a("s_nop 1")
            a(f"v_add_f32_dpp v42, v42, v42 row_ror:{r} row_mask:0xf bank_mask:0xf")
        a("v_rcp_f32 v42, v42")
        a("s_waitcnt lgkmcnt(0)")
        a("v_sub_f32 v45, v45, v44")
        a(f"v_mul_f32 v45, s{S_L2E}, v45")
        a("v_exp_f32 v45, v45")
        a("s_nop 0")
        a("v_mul_f32 v45, v45, v42")
        a("s_mov_b64 exec, 15")
        a(f"ds_write_b32 v25, v45 offset:{L_SCL}")
        a("s_mov_b64 exec, -1")
        self.lds_flag_set(L_FL + 4)
        self.stamp(7)
        c("gather this workgroup's 16 columns of o from the head's 32 waves, project through wo")
        a("v_lshlrev_b32 v25, 2, v9")
        a("v_lshl_add_u32 v25, v8, 4, v25")
        a(f"s_lshl_b32 s79, s{S_SLOT}, 11")
        a(f"s_add_u32 s79, s79, {WS_OX:#x}")
        self.lds_flag_wait("last", L_FL + 8, 32)
        a("L_owait:")
        a(f"buffer_load_dwordx4 v[60:63], v25, {W}, s79 offen sc1")
        a(f"buffer_load_dwordx4 v[64:67], v25, {W}, s79 offen offset:1024 sc1")
        a("s_waitcnt vmcnt(0)")
        self.tag_check([60, 64], 20, 21, 22, quad=False)
        a("s_and_b64 vcc, vcc, exec")
        a("s_cbranch_scc0 L_odone")
        self.retry("L_owait", self.o_sleep)
        a("L_odone:")
        self.stamp(8)
        self.tag_strip(60, 68)
        for i in range(4):
            a(f"v_add_f32 v{60 + i}, v{60 + i}, v{64 + i}")
        for r in (8, 4, 2, 1):
            for i in range(4):
                a(f"v_add_f32_dpp v{60 + i}, v{60 + i}, v{60 + i} row_ror:{r} row_mask:0xf bank_mask:0xf")
        for i in range(4):
            a(f"v_cvt_pk_bf16_f32 v{60 + i}, v{60 + i}, v{60 + i}")
        self.row_frag_project(4, 60, 96, WS_YA)
        self.stamp(9)
        self.stamp_flush()
        a("s_endpgm")

    def build(self, header):
        a = self.a
        a("s_cmp_ge_u32 s2, 256")
        a("s_cbranch_scc1 L_exit")
        a("s_load_dwordx16 s[4:19], s[0:1], 0")
        a("s_load_dwordx8 s[20:27], s[0:1], 64")
        a("s_load_dwordx2 s[28:29], s[0:1], 96")
        a("v_lshrrev_b32 v1, 6, v0")
        a("v_and_b32 v0, 63, v0")
        a(f"v_readfirstlane_b32 s{S_WAVE}, v1")
        if self.xlocal:
            a(f"s_and_b32 s{S_T0}, s2, 7")
            a(f"s_lshl_b32 s{S_T0}, s{S_T0}, 5")
            a(f"s_lshr_b32 s{S_T1}, s2, 3")
            a(f"s_add_u32 s{S_SLOT}, s{S_T0}, s{S_T1}")
        else:
            a(f"s_mov_b32 s{S_SLOT}, s2")
        self.c("slot = 8 * head + split")
        a(f"s_and_b32 s{S_SPL}, s{S_SLOT}, 7")
        a(f"s_lshr_b32 s{S_HEAD}, s{S_SLOT}, 3")
        a(f"s_sub_u32 s{S_RED}, s2, 128")
        a(f"s_mov_b32 s{S_SPIN}, 0")
        if self.stamps:
            a("v_mov_b32 v250, 0")
            self.stamp(0)
        a(f"s_cmp_eq_u32 s{S_WAVE}, 4")
        a("s_cbranch_scc1 L_helper")
        self.streamer()
        self.helper()
        a("L_exit:")
        body = "\n".join(x if x.endswith(":") else "    " + x for x in self.L)
        k = NAME + "_kernel"
        return f"""{header}
; @launch grid=(256,1,1) block=(320,1,1) lds={LDS_BYTES}
.amdgcn_target "amdgcn-amd-amdhsa--gfx950"
.text
.globl {k}
.p2align 8
.type {k},@function
{k}:
{body}
    s_endpgm
.section .rodata,"a"
.p2align 6
.amdhsa_kernel {k}
  .amdhsa_next_free_vgpr 256
  .amdhsa_next_free_sgpr 96
  .amdhsa_accum_offset 256
  .amdhsa_group_segment_fixed_size 0
  .amdhsa_kernarg_size 104
  .amdhsa_user_sgpr_count 2
  .amdhsa_user_sgpr_kernarg_segment_ptr 1
  .amdhsa_system_sgpr_workgroup_id_x 1
  .amdhsa_float_denorm_mode_32 3
.end_amdhsa_kernel
"""


def generate(**kw):
    ref = open(f"cdna_kernels/{NAME}.s.ref").read().splitlines()
    head = []
    for line in ref:
        if line.startswith("; Override launch"):
            break
        head.append(line)
    return Gen(**kw).build("\n".join(head))


if __name__ == "__main__":
    kw = eval("dict(" + (sys.argv[2] if len(sys.argv) > 2 else "") + ")")
    out = sys.argv[1] if len(sys.argv) > 1 else f"cdna_kernels/{NAME}.s"
    open(out, "w").write(generate(**kw))
```

```python
import sys

NAME = "parallel_sum__mha_block_cached__dense_activation_gelu__decode"

WS_EP = 0
WS_SX = 0x1000
WS_QX = 0x10000
WS_HX = 0x50000
WS_OX = 0xD0000
WS_YA = 0x150000
WS_YB = 0x1E0000
WS_DBG = 0x280000
WS_SIZE = 0x300000

L_SC = 0
L_XR = 8192
L_QB = 10496
L_MS = 10752
L_FL = 10768
L_SCL = 10784
L_HR = 10816
L_FN = 10944
L_RP = 11072
L_W1 = 12288
LDS_BYTES = 86016

TAG_A = 0x9E3779B9
TAG_B = 0x7F4A7C15
LOG2E = 0x3FB8AA3B
SCALE = 0x3DB504F3

S_X, S_K, S_V, S_WQ, S_WO, S_W1, S_B1, S_W2, S_B2, S_OUT, S_DBG, S_WS = 4, 6, 8, 10, 12, 16, 18, 20, 22, 24, 26, 28
S_EP = 30
S_CUR = 32
S_SOFF, S_CNT, S_HB, S_IT = 36, 37, 38, 39
S_A = 40
S_B = 44
S_W = 48
S_WAVE, S_HEAD, S_SPL, S_SLOT = 52, 53, 54, 55
S_T0, S_T1 = 58, 59
S_ODD, S_BIT1 = 60, 62
S_SCALE, S_L2E = 64, 65
S_TAGA, S_TAGB = 66, 67
S_RED = 68
S_T2, S_T3 = 70, 71
S_BYTE = 72
S_ROW, S_POS = 73, 74
S_TS = 76
S_SPIN = 78
SPIN_CAP = 1 << 21
S_EX = 84

W = f"s[{S_W}:{S_W + 3}]"
A = f"s[{S_A}:{S_A + 3}]"
B = f"s[{S_B}:{S_B + 3}]"


class Gen:
    RING = 32
    D = 16

    def __init__(self, LA=5, waits="5", rot=256, w_flags="nt", stamps=False, pre_waits=6, pre=32, twist=0,
                 boost=0, boost_waits="5", xlocal=False, o_sleep=0, skip="", perturb=None):
        self.LA, self.rot, self.w_flags, self.stamps, self.skip = LA, rot, w_flags, stamps, skip
        self.waits = [int(c, 16) for c in waits]
        self.boost, self.boost_waits = boost, [int(c, 16) for c in boost_waits]
        self.pre_n, self.pre, self.twist, self.xlocal, self.o_sleep = pre_waits, pre, twist, xlocal, o_sleep
        assert pre in (16, 32, 48) and all(2 <= n <= LA for n in self.waits + self.boost_waits) and LA < self.D
        self.perturb = perturb
        self.L = []

    def a(self, s):
        self.L.append(s)

    def c(self, s):
        self.L.append("; " + s)

    def srd(self, r, p, size):
        self.a(f"s_mov_b32 s{r}, s{p}")
        self.a(f"s_and_b32 s{r + 1}, s{p + 1}, 0xffff")
        self.a(f"s_mov_b32 s{r + 2}, {size:#x}")
        self.a(f"s_mov_b32 s{r + 3}, 0x20000")

    def set_exec(self, lo, hi):
        self.a(f"s_mov_b32 exec_lo, {lo:#x}")
        self.a(f"s_mov_b32 exec_hi, {hi:#x}")

    def stamp(self, idx):
        if not self.stamps:
            return
        self.a(f"s_memrealtime s[{S_TS}:{S_TS + 1}]")
        self.a("s_waitcnt lgkmcnt(0)")
        self.a(f"v_writelane_b32 v250, s{S_TS}, {idx}")

    def stamp_flush(self):
        if not self.stamps:
            return
        a = self.a
        a("s_mov_b64 exec, -1")
        a(f"s_mul_i32 s{S_TS}, s2, 5")
        a(f"s_add_u32 s{S_TS}, s{S_TS}, s{S_WAVE}")
        a(f"s_lshl_b32 s{S_TS}, s{S_TS}, 6")
        a(f"s_add_u32 s{S_TS}, s{S_TS}, {WS_DBG:#x}")
        a("v_lshlrev_b32 v251, 2, v0")
        a("s_mov_b64 exec, 0xffff")
        a(f"buffer_store_dword v250, v251, {W}, s{S_TS} offen")

    def retry(self, label, sleep=0):
        if sleep:
            self.a(f"s_sleep {sleep}")
        self.a(f"s_add_u32 s{S_SPIN}, s{S_SPIN}, 1")
        self.a(f"s_cmp_lt_u32 s{S_SPIN}, {SPIN_CAP:#x}")
        self.a(f"s_cbranch_scc1 {label}")

    def allreduce(self, op, v, t):
        a = self.a
        for r in (8, 4, 2, 1):
            a("s_nop 1")
            a(f"{op}_dpp v{v}, v{v}, v{v} row_ror:{r} row_mask:0xf bank_mask:0xf")
        for sw in ("v_permlane16_swap_b32", "v_permlane32_swap_b32"):
            a(f"v_mov_b32 v{t}, v{v}")
            a("s_nop 1")
            a(f"{sw} v{v}, v{t}")
            a(f"{op} v{v}, v{v}, v{t}")

    def quad_col_reduce(self, vs, ts):
        a = self.a
        for r in (4, 8):
            for v in vs:
                a(f"v_add_f32_dpp v{v}, v{v}, v{v} row_ror:{r} row_mask:0xf bank_mask:0xf")
        for sw in ("v_permlane16_swap_b32", "v_permlane32_swap_b32"):
            for v, t in zip(vs, ts):
                a(f"v_mov_b32 v{t}, v{v}")
            for v, t in zip(vs, ts):
                a(f"{sw} v{v}, v{t}")
            for v, t in zip(vs, ts):
                a(f"v_add_f32 v{v}, v{v}, v{t}")

    def rbf(self, v):
        self.a(f"v_cvt_pk_bf16_f32 v{v}, v{v}, v{v}")
        self.a(f"v_and_b32 v{v}, 0xffff0000, v{v}")

    def masks(self, m0, t0, t1):
        a = self.a
        a(f"v_and_b32 v{t0}, 1, v0")
        a(f"v_lshlrev_b32 v{t0}, 4, v{t0}")
        a(f"v_mov_b32 v{t1}, 0xffff")
        a(f"v_lshlrev_b32 v{t0}, v{t0}, v{t1}")
        a(f"v_bfe_u32 v{t1}, v0, 1, 2")
        for i in range(4):
            a(f"v_cmp_eq_u32 vcc, {i}, v{t1}")
            a("s_nop 1")
            a(f"v_cndmask_b32 v{m0 + i}, 0, v{t0}, vcc")

    def a_frag(self, dst, src):
        for d in range(4):
            self.a(f"v_and_b32 v{dst + d}, v{src}, v{2 + d}")

    def mfma(self, acc, fa, fb, first=False):
        c = "0" if first else f"v[{acc}:{acc + 3}]"
        self.a(f"v_mfma_f32_16x16x32_bf16 v[{acc}:{acc + 3}], v[{fa}:{fa + 3}], v[{fb}:{fb + 3}], {c}")

    def lds_flag_wait(self, name, off, sleep, value=1):
        a = self.a
        a(f"v_mov_b32 v20, {off}")
        a(f"L_{name}_wait:")
        a("ds_read_b32 v21, v20")
        a("s_waitcnt lgkmcnt(0)")
        a(f"v_readfirstlane_b32 s{S_T0}, v21")
        a(f"s_cmp_eq_u32 s{S_T0}, {value}")
        a(f"s_cbranch_scc1 L_{name}_ok")
        self.retry(f"L_{name}_wait", sleep)
        a(f"L_{name}_ok:")

    def lds_flag_set(self, off):
        self.a(f"v_mov_b32 v20, {off}")
        self.a("v_mov_b32 v21, 1")
        self.a("ds_write_b32 v20, v21")

    def load_tags(self):
        self.a(f"s_add_u32 s{S_TAGA}, s{S_EP}, {TAG_A:#x}")
        self.a(f"s_add_u32 s{S_TAGB}, s{S_EP + 1}, {TAG_B:#x}")

    def tag_bytes(self, t0):
        self.a(f"s_mov_b32 s{S_BYTE}, 0xff")
        for i in range(4):
            self.a(f"v_lshrrev_b32_e64 v{t0 + i}, {8 * i}, s{S_TAGA}")

    def tag_insert(self, r, t0):
        for i in range(4):
            self.a(f"v_bfi_b32 v{r + i}, s{S_BYTE}, v{t0 + i}, v{r + i}")

    def tag_consts(self):
        self.a(f"s_mov_b32 s{S_T2}, 0x0c0c0400")
        self.a(f"s_mov_b32 s{S_T3}, 0x04000c0c")

    def tag_check(self, granules, acc, t0, t1, quad=True):
        a = self.a
        for k, r in enumerate(granules):
            a(f"v_perm_b32 v{t0}, v{r + 1}, v{r}, s{S_T2}")
            a(f"v_perm_b32 v{t1}, v{r + 3}, v{r + 2}, s{S_T3}")
            a(f"v_or_b32 v{t0}, v{t0}, v{t1}")
            if k == 0:
                a(f"v_xor_b32 v{acc}, s{S_TAGA}, v{t0}")
            else:
                a(f"v_xor_b32 v{t0}, s{S_TAGA}, v{t0}")
                a(f"v_or_b32 v{acc}, v{acc}, v{t0}")
        if quad:
            for qp in ("[1,0,3,2]", "[2,3,0,1]"):
                a("s_nop 1")
                a(f"v_or_b32_dpp v{acc}, v{acc}, v{acc} quad_perm:{qp} row_mask:0xf bank_mask:0xf")
        a(f"v_cmp_ne_u32 vcc, 0, v{acc}")

    def tag_strip(self, lo, hi):
        for r in range(lo, hi):
            self.a(f"v_and_b32 v{r}, 0xffffff00, v{r}")

    def frag_store_offset(self, dst, shift, t):
        a = self.a
        a(f"v_bfe_u32 v{dst}, v0, 1, 3")
        a(f"v_lshlrev_b32 v{dst}, {shift}, v{dst}")
        a(f"v_and_b32 v{t}, 1, v0")
        a(f"v_lshl_add_u32 v{dst}, v{t}, 5, v{dst}")
        a(f"v_and_b32 v{t}, 16, v0")
        a(f"v_add_u32 v{dst}, v{dst}, v{t}")

    def slot(self, n):
        if self.D <= n < self.pre:
            return 96 + 4 * (n - self.D)
        return self.RING + 4 * (n % self.D)

    def issue(self, n, r=None):
        a = self.a
        if r is None:
            r = self.RING + 4 * (n % self.D)
        a(f"buffer_load_dwordx4 v[{r}:{r + 3}], v1, s[{S_CUR}:{S_CUR + 3}], s{S_SOFF} offen offset:{(n % 4) * 1024} nt")
        if n % 4 == 3:
            if self.twist:
                a(f"s_add_u32 s{S_ROW}, s{S_ROW}, 0x20000")
                a(f"s_and_b32 s{S_ROW}, s{S_ROW}, 0x7e0000")
                a(f"s_add_u32 s{S_POS}, s{S_POS}, {self.twist * 4096:#x}")
                a(f"s_and_b32 s{S_POS}, s{S_POS}, 0x1f000")
                a(f"s_or_b32 s{S_SOFF}, s{S_ROW}, s{S_POS}")
            else:
                a(f"s_add_u32 s{S_SOFF}, s{S_SOFF}, 0x20000")
                a(f"s_and_b32 s{S_SOFF}, s{S_SOFF}, 0x7fffff")
            a(f"s_or_b32 s{S_SOFF}, s{S_SOFF}, s{S_HB}")
            a(f"s_add_u32 s{S_CNT}, s{S_CNT}, 1")
            a(f"s_cmp_eq_u32 s{S_CNT}, 64")
            a(f"s_cselect_b32 s{S_CUR}, s{S_V}, s{S_CUR}")
            a(f"s_cselect_b32 s{S_CUR + 1}, s{S_V + 1}, s{S_CUR + 1}")

    def k_consume(self, j, r=None):
        a = self.a
        if r is None:
            r = self.RING + 4 * j
        p = 12 + j % 4
        a(f"v_dot2_f32_bf16 v{p}, v{r}, v6, 0")
        for d in range(1, 4):
            a(f"v_dot2_f32_bf16 v{p}, v{r + d}, v{6 + d}, v{p}")
        if j % 4 == 3:
            t = 16 + j // 4
            a("v_add_f32_dpp v12, v12, v12 row_ror:8 row_mask:0xf bank_mask:0x3")
            a("v_add_f32_dpp v12, v14, v14 row_ror:8 row_mask:0xf bank_mask:0xc")
            a("v_add_f32_dpp v13, v13, v13 row_ror:8 row_mask:0xf bank_mask:0x3")
            a("v_add_f32_dpp v13, v15, v15 row_ror:8 row_mask:0xf bank_mask:0xc")
            a(f"v_add_f32_dpp v{t}, v12, v12 row_shl:4 row_mask:0xf bank_mask:0x5")
            a("s_nop 0")
            a(f"v_add_f32_dpp v{t}, v13, v13 row_shr:4 row_mask:0xf bank_mask:0xa")
        if j == self.D - 1:
            qp1 = "quad_perm:[1,0,3,2] row_mask:0xf bank_mask:0xf"
            qp2 = "quad_perm:[2,3,0,1] row_mask:0xf bank_mask:0xf"
            for t in range(16, 20):
                a(f"v_add_f32_dpp v{t}, v{t}, v{t} {qp1}")
            a(f"v_cndmask_b32 v16, v16, v17, s[{S_ODD}:{S_ODD + 1}]")
            a(f"v_cndmask_b32 v18, v18, v19, s[{S_ODD}:{S_ODD + 1}]")
            a("s_nop 0")
            a(f"v_add_f32_dpp v16, v16, v16 {qp2}")
            a(f"v_add_f32_dpp v18, v18, v18 {qp2}")
            a(f"v_cndmask_b32 v20, v16, v18, s[{S_BIT1}:{S_BIT1 + 1}]")
            self.rbf(20)
            a(f"v_mul_f32 v20, s{S_SCALE}, v20")
            self.rbf(20)
            a("v_max_f32 v10, v10, v20")
            a("ds_write_b16_d16_hi v11, v20")
            a("v_add_u32 v11, 128, v11")

    def v_softmax(self):
        a = self.a
        a("s_waitcnt lgkmcnt(0)")
        a(f"v_fma_f32 v20, v245, s{S_L2E}, v23")
        a("v_exp_f32 v20, v20")
        a("s_nop 0")
        a("v_cvt_pk_bf16_f32 v241, v20, v20")

    def v_consume(self, j):
        a = self.a
        src = 4 * (j % 4) + j // 4
        for d in range(4):
            a(f"v_and_b32_dpp v{28 + d}, v241, v{2 + d} row_newbcast:{src} row_mask:0xf bank_mask:0xf")
        a("s_nop 1")
        self.mfma(24, 28, self.RING + 4 * j)

    def v_loop(self, label, waits, upto):
        a = self.a
        a(f"{label}:")
        self.v_softmax()
        for j in range(self.D):
            a(f"s_waitcnt vmcnt({waits[j % len(waits)] - 1})")
            self.issue(j + self.LA)
            self.v_consume(j)
            if j == 8:
                a("ds_read_u16_d16_hi v245, v22")
                a("v_add_u32 v22, 128, v22")
        a(f"s_add_u32 s{S_IT}, s{S_IT}, 1")
        a(f"s_cmp_lt_u32 s{S_IT}, {upto}")
        a(f"s_cbranch_scc1 {label}")

    def streamer(self):
        a, c, D, LA, pre = self.a, self.c, self.D, self.LA, self.pre
        c("---- streaming waves: K pass (scores), V pass (weighted sum) ----")
        a("v_lshlrev_b32 v1, 4, v0")
        a(f"s_lshl_b32 s{S_HB}, s{S_HEAD}, 23")
        a(f"s_lshl_b32 s{S_T0}, s{S_SPL}, 2")
        a(f"s_add_u32 s{S_T0}, s{S_T0}, s{S_WAVE}")
        a(f"s_lshl_b32 s{S_POS}, s{S_T0}, 12")
        a(f"s_mul_i32 s{S_ROW}, s{S_HEAD}, {self.rot * 1024}")
        a(f"s_and_b32 s{S_ROW}, s{S_ROW}, 0x7e0000")
        a(f"s_or_b32 s{S_SOFF}, s{S_ROW}, s{S_POS}")
        a(f"s_or_b32 s{S_SOFF}, s{S_SOFF}, s{S_HB}")
        a(f"s_mov_b32 s{S_CNT}, 0")
        c("s79: destination of this wave's o partial")
        a(f"s_lshl_b32 s79, s{S_T0}, 6")
        a(f"s_lshl_b32 s{S_T1}, s{S_HEAD}, 14")
        a(f"s_add_u32 s79, s79, s{S_T1}")
        a(f"s_add_u32 s79, s79, {WS_OX:#x}")
        a("s_waitcnt lgkmcnt(0)")
        self.srd(S_CUR, S_K, 0x10000000)
        a(f"s_and_b32 s{S_V + 1}, s{S_V + 1}, 0xffff")
        for n in range(self.pre_n):
            self.issue(n, self.slot(n))
        a(f"s_load_dwordx2 s[{S_EP}:{S_EP + 1}], s[{S_WS}:{S_WS + 1}], {WS_EP}")
        a("s_barrier")
        self.srd(S_W, S_WS, WS_SIZE)
        self.masks(2, 20, 21)
        a(f"s_mov_b32 s{S_ODD}, 0xaaaaaaaa")
        a(f"s_mov_b32 s{S_ODD + 1}, 0xaaaaaaaa")
        a(f"s_mov_b32 s{S_BIT1}, 0xcccccccc")
        a(f"s_mov_b32 s{S_BIT1 + 1}, 0xcccccccc")
        a(f"s_mov_b32 s{S_SCALE}, {SCALE:#x}")
        a(f"s_mov_b32 s{S_L2E}, {LOG2E:#x}")
        a("v_mov_b32 v10, 0xff800000")
        a(f"s_lshl_b32 s{S_T0}, s{S_WAVE}, 11")
        a(f"s_add_u32 s{S_T0}, s{S_T0}, {L_SC}")
        a(f"v_lshl_add_u32 v11, v0, 1, s{S_T0}")
        a("v_mov_b32 v22, v11")
        a("v_and_b32 v23, 15, v0")
        a("v_lshlrev_b32 v23, 4, v23")
        a("v_mov_b32 v245, 0")
        for i in range(24, 28):
            a(f"v_mov_b32 v{i}, 0")
        self.frag_store_offset(243, 11, 20)
        for n in range(self.pre_n, pre):
            a(f"s_waitcnt vmcnt({self.pre_n - 1})")
            self.issue(n, self.slot(n))
        self.stamp(1)
        self.lds_flag_wait("q", L_FL, 1)
        a(f"ds_read_b128 v[6:9], v23 offset:{L_QB}")
        self.load_tags()
        a("s_waitcnt lgkmcnt(0)")
        self.stamp(2)
        c("first K bodies: drain the prefetched loads")
        nre = min(LA, self.waits[0])
        done = 0
        for k in range(pre):
            a(f"s_waitcnt vmcnt({pre - 1 + done - k})")
            self.k_consume(k % D, self.slot(k))
            if k < nre or (k >= pre - (LA - nre)):
                self.issue(pre + done)
                done += 1
        assert done == LA
        a(f"s_mov_b32 s{S_IT}, {pre // D}")
        a("L_kloop:")
        for j in range(D):
            a(f"s_waitcnt vmcnt({self.waits[j % len(self.waits)] - 1})")
            self.issue(j + LA)
            self.k_consume(j)
        a(f"s_add_u32 s{S_IT}, s{S_IT}, 1")
        a(f"s_cmp_lt_u32 s{S_IT}, 16")
        a("s_cbranch_scc1 L_kloop")
        self.stamp(3)
        c("wave maximum of the scores")
        a("ds_read_u16_d16_hi v245, v22")
        a("v_add_u32 v22, 128, v22")
        self.allreduce("v_max_f32", 10, 20)
        a(f"v_mul_f32_e64 v23, -v10, s{S_L2E}")
        a("v_min_u32 v10, -2, v10")
        a(f"s_lshl_b32 s{S_T0}, s{S_WAVE}, 2")
        a(f"v_mov_b32 v240, s{S_T0}")
        a("s_mov_b64 exec, 1")
        a(f"ds_write_b32 v240, v10 offset:{L_MS}")
        a("s_mov_b64 exec, -1")
        a(f"s_mov_b32 s{S_IT}, 0")
        nb = max(self.boost - 1, 0)
        self.v_loop("L_vloop", self.waits, 15 - nb)
        if nb:
            self.v_loop("L_vboost", self.boost_waits, 15)
        c("last V body")
        lw = self.boost_waits if self.boost else self.waits
        self.v_softmax()
        for j in range(D):
            if j + LA < D:
                a(f"s_waitcnt vmcnt({lw[j % len(lw)] - 1})")
                self.issue(j + LA)
            else:
                a(f"s_waitcnt vmcnt({D - 1 - j})")
            self.v_consume(j)
            if j == 0:
                self.lds_flag_wait("scale", L_FL + 4, 2)
                a(f"ds_read_b32 v10, v240 offset:{L_SCL}")
                self.tag_bytes(6)
                self.tag_consts()
                c("v240 / s80..s83: gather offsets of the final reduction")
                a(f"s_lshl_b32 s{S_T1}, s{S_WAVE}, 10")
                a(f"v_lshl_add_u32 v240, v0, 4, s{S_T1}")
                a(f"s_lshl_b32 s{S_T1}, s{S_RED}, 14")
                a(f"s_add_u32 s80, s{S_T1}, {WS_YA:#x}")
                for i in range(1, 4):
                    a(f"s_add_u32 s{80 + i}, s80, {i * 4096}")
                a(f"v_mov_b32 v22, {L_FL + 8}")
                a("v_mov_b32 v23, 1")
                a("s_waitcnt lgkmcnt(0)")
        self.stamp(4)
        c("publish this wave's normalised partial o with this launch's tag in the low bytes")
        a("s_mov_b32 exec_hi, 0")
        a("s_nop 6")
        for i in range(24, 28):
            a(f"v_mul_f32 v{i}, v10, v{i}")
        self.tag_insert(24, 6)
        a(f"buffer_store_dwordx4 v[24:27], v243, {W}, s79 offen sc1")
        a("s_mov_b64 exec, 1")
        a("ds_add_u32 v22, v23")
        a("s_mov_b64 exec, -1")
        self.stamp(7)
        a(f"s_cmp_lt_u32 s{S_RED}, 36")
        a("s_cbranch_scc0 L_finish")
        c("---- final reduction of 16 output columns over all 256 workgroups ----")
        a("L_gather:")
        for i in range(4):
            a(f"buffer_load_dwordx4 v[{40 + 4 * i}:{43 + 4 * i}], v240, {W}, s{80 + i} offen sc1")
        a("s_waitcnt vmcnt(0)")
        self.tag_check([40, 44, 48, 52], 20, 21, 22)
        a("s_and_b64 exec, exec, vcc")
        a("s_cbranch_execz L_gathered")
        self.retry("L_gather", self.o_sleep)
        a("L_gathered:")
        a("s_mov_b64 exec, -1")
        self.stamp(8)
        self.tag_strip(40, 56)
        for i in range(4):
            a(f"v_add_f32 v{40 + i}, v{40 + i}, v{44 + i}")
        for i in range(4):
            a(f"v_add_f32 v{48 + i}, v{48 + i}, v{52 + i}")
        for i in range(4):
            a(f"v_add_f32 v{64 + i}, v{40 + i}, v{48 + i}")
        self.quad_col_reduce([64, 65, 66, 67], [60, 61, 62, 63])
        a(f"s_lshl_b32 s{S_T0}, s{S_WAVE}, 6")
        a(f"v_lshl_add_u32 v20, v0, 4, s{S_T0}")
        a("s_mov_b64 exec, 15")
        a(f"ds_write_b128 v20, v[64:67] offset:{L_RP}")
        a("s_waitcnt lgkmcnt(0)")
        a("s_barrier")
        a(f"s_cmp_eq_u32 s{S_WAVE}, 0")
        a("s_cbranch_scc0 L_finish")
        for w in range(4):
            a(f"ds_read_b128 v[{32 + 4 * w}:{35 + 4 * w}], v20 offset:{L_RP + w * 64}")
        a(f"ds_read_b128 v[48:51], v20 offset:{L_FN}")
        a(f"ds_read_b128 v[52:55], v20 offset:{L_FN + 64}")
        self.srd(S_A, S_OUT, 1152)
        a(f"s_lshl_b32 s{S_T0}, s{S_RED}, 5")
        a(f"v_lshl_add_u32 v21, v0, 3, s{S_T0}")
        a("s_waitcnt lgkmcnt(2)")
        for w in range(1, 4):
            for i in range(4):
                a(f"v_add_f32 v{32 + i}, v{32 + i}, v{32 + 4 * w + i}")
        for i in range(4):
            self.rbf(32 + i)
        a("s_waitcnt lgkmcnt(0)")
        for i in range(4):
            a(f"v_add_f32 v{32 + i}, v{48 + i}, v{32 + i}")
        for i in range(4):
            self.rbf(32 + i)
        for i in range(4):
            a(f"v_add_f32 v{32 + i}, v{32 + i}, v{52 + i}")
        if self.perturb:
            import struct
            bits = struct.unpack("<I", struct.pack("<f", self.perturb[0]))[0]
            a(f"s_cmp_lt_u32 s{S_RED}, {self.perturb[1]}")
            a(f"s_cselect_b32 s{S_T0}, {bits:#x}, 0")
            for i in range(4):
                a(f"v_add_f32 v{32 + i}, s{S_T0}, v{32 + i}")
        a("v_cvt_pk_bf16_f32 v32, v32, v33")
        a("v_cvt_pk_bf16_f32 v33, v34, v35")
        a(f"buffer_store_dwordx2 v[32:33], v21, {A}, 0 offen")
        a(f"s_cmp_eq_u32 s{S_RED}, 0")
        a("s_cbranch_scc0 L_finish")
        c("every workgroup has consumed the epoch words: advance them")
        a("s_mov_b64 exec, 1")
        a(f"v_mov_b32 v22, s{S_TAGA}")
        a(f"v_mov_b32 v23, s{S_TAGB}")
        a(f"buffer_store_dwordx2 v[22:23], v20, {W}, 0 offen offset:{WS_EP}")
        a("L_finish:")
        self.stamp(9)
        self.stamp_flush()
        a("s_endpgm")

    def pair_publish(self, acc, soff, imm=0):
        a = self.a
        a(f"v_cndmask_b32 v92, v{acc + 2}, v{acc}, s[{S_ODD}:{S_ODD + 1}]")
        a(f"v_cndmask_b32 v94, v{acc + 3}, v{acc + 1}, s[{S_ODD}:{S_ODD + 1}]")
        a(f"buffer_store_dwordx4 v[92:95], v6, {W}, s{soff} offen offset:{imm} sc1")

    def pair_prepoll(self, name, soff, shift, sleep):
        a = self.a
        a(f"v_lshlrev_b32 v52, {shift}, v0")
        a("s_mov_b64 exec, 0xff")
        a(f"L_{name}_pre:")
        a(f"buffer_load_dwordx4 v[20:23], v52, {W}, s{soff} offen sc1")
        a("s_waitcnt vmcnt(0)")
        a(f"v_xor_b32 v21, s{S_TAGA}, v21")
        a(f"v_xor_b32 v23, s{S_TAGB}, v23")
        a("v_or_b32 v21, v21, v23")
        a("v_cmp_ne_u32 vcc, 0, v21")
        a("s_and_b64 exec, exec, vcc")
        a(f"s_cbranch_execz L_{name}_seen")
        self.retry(f"L_{name}_pre", sleep)
        a(f"L_{name}_seen:")
        a("s_mov_b64 exec, -1")

    def pair_gather(self, name, srcs, sleep):
        a = self.a
        a(f"s_mov_b64 s[{S_EX}:{S_EX + 1}], exec")
        a(f"L_{name}_poll:")
        for s, (soff, imm) in enumerate(srcs):
            a(f"buffer_load_dwordx4 v[{20 + 4 * s}:{23 + 4 * s}], v6, {W}, s{soff} offen offset:{imm} sc1")
        a("s_waitcnt vmcnt(0)")
        for t, (first, tag) in enumerate(((21, S_TAGA), (23, S_TAGB))):
            rs = [first + 4 * s for s in range(8)]
            lo, hi = 52 + 2 * t, 53 + 2 * t
            for op, d in (("min", lo), ("max", hi)):
                a(f"v_{op}3_u32 v{d}, v{rs[0]}, v{rs[1]}, v{rs[2]}")
                a(f"v_{op}3_u32 v{d}, v{d}, v{rs[3]}, v{rs[4]}")
                a(f"v_{op}3_u32 v{d}, v{d}, v{rs[5]}, v{rs[6]}")
                a(f"v_{op}_u32 v{d}, v{d}, v{rs[7]}")
                a(f"v_xor_b32 v{d}, s{tag}, v{d}")
        a("v_or3_b32 v52, v52, v53, v54")
        a("v_or_b32 v52, v52, v55")
        a("v_cmp_ne_u32 vcc, 0, v52")
        a("s_and_b64 exec, exec, vcc")
        a(f"s_cbranch_execz L_{name}_done")
        self.retry(f"L_{name}_poll", sleep)
        a(f"L_{name}_done:")
        a(f"s_mov_b64 exec, s[{S_EX}:{S_EX + 1}]")
        for s in range(1, 8):
            a(f"v_add_f32 v20, v20, v{20 + 4 * s}")
            a(f"v_add_f32 v22, v22, v{22 + 4 * s}")

    def row_frag_loads(self, rows, voff, dst):
        a = self.a
        for j in range(rows):
            for b in range(4):
                r = dst + 4 * (5 * j + b)
                a(f"buffer_load_dwordx4 v[{r}:{r + 3}], v{voff}, {B}, s{S_T0} offen offset:{256 * b} {self.w_flags}")
            r = dst + 4 * (5 * j + 4)
            self.set_exec(0x00FF00FF, 0x00FF00FF)
            a(f"buffer_load_dwordx4 v[{r}:{r + 3}], v{voff}, {B}, s{S_T0} offen offset:1024 {self.w_flags}")
            a("s_mov_b64 exec, -1")
            if j < rows - 1:
                a(f"s_add_u32 s{S_T0}, s{S_T0}, 1152")

    def row_frag_project(self, rows, aval, src, base):
        a = self.a
        for j in range(rows):
            self.a_frag(84 + 4 * (j % 2), aval + j)
            a("s_nop 1")
            for b in range(5):
                self.mfma(40 + 4 * b, 84 + 4 * (j % 2), src + 4 * (5 * j + b), first=(j == 0))
        a(f"s_lshl_b32 s{S_T0}, s{S_SLOT}, 6")
        a(f"s_add_u32 s{S_T0}, s{S_T0}, {base:#x}")
        a("s_mov_b32 exec_hi, 0")
        a("s_nop 0")
        for b in range(5):
            self.tag_insert(40 + 4 * b, 12)
            if b == 4:
                a("s_mov_b32 exec_lo, 0x00ff00ff")
            if not (base == WS_YB and "yb" in self.skip):
                a(f"buffer_store_dwordx4 v[{40 + 4 * b}:{43 + 4 * b}], v17, {W}, s{S_T0} offen sc1")
            if b < 4:
                a(f"s_add_u32 s{S_T0}, s{S_T0}, 0x20000")
        a("s_mov_b64 exec, -1")

    def gelu(self, v, t0, t1):
        a = self.a
        a(f"v_mul_f32 v{t0}, v{v}, v{v}")
        a(f"v_mul_f32 v{t0}, v{t0}, v{v}")
        a(f"v_mov_b32 v{t1}, v{v}")
        a(f"v_fmac_f32 v{t1}, 0x3d372713, v{t0}")
        a(f"v_mul_f32 v{t1}, 0xc0135761, v{t1}")
        a(f"v_exp_f32 v{t1}, v{t1}")
        a("s_nop 0")
        a(f"v_add_f32 v{t1}, 1.0, v{t1}")
        a(f"v_rcp_f32 v{t1}, v{t1}")
        a("s_nop 0")
        a(f"v_mul_f32 v{v}, v{v}, v{t1}")
        a(f"v_cvt_pk_bf16_f32 v{v}, v{v}, v{v}")

    def helper(self):
        a, c = self.a, self.c
        a("L_helper:")
        c("---- helper wave: layernorm, q / FFN projections and their exchanges, output projection ----")
        a("v_lshlrev_b32 v1, 2, v0")
        a("v_lshrrev_b32 v8, 4, v0")
        a("v_and_b32 v9, 15, v0")
        a("v_lshlrev_b32 v9, 4, v9")
        a("v_mul_u32_u24 v7, 147456, v8")
        a("v_add_u32 v7, v7, v9")
        a("v_mul_u32_u24 v16, 165888, v8")
        a("v_add_u32 v16, v16, v9")
        a(f"s_mul_i32 s{S_T0}, s{S_SPL}, 589824")
        a(f"s_lshl_b32 s{S_T1}, s{S_HEAD}, 8")
        a(f"s_add_u32 s{S_T0}, s{S_T0}, s{S_T1}")
        a(f"s_mul_i32 s79, s{S_SPL}, 663552")
        a(f"s_mul_i32 s{S_T1}, s{S_HEAD}, 288")
        a(f"s_add_u32 s79, s79, s{S_T1}")
        for i in range(4):
            a(f"v_mov_b32 v{20 + i}, -1")
            a(f"v_mov_b32 v{24 + i}, 0")
        a("s_mov_b64 exec, 1")
        a(f"ds_write_b128 v1, v[20:23] offset:{L_MS}")
        a(f"ds_write_b128 v1, v[24:27] offset:{L_FL}")
        a(f"ds_write_b64 v1, v[24:25] offset:{L_HR + 72}")
        a("s_mov_b64 exec, -1")
        a("s_waitcnt lgkmcnt(0)")
        self.srd(S_A, S_X, 1152)
        for i in range(5):
            a(f"buffer_load_dword v{10 + i}, v1, {A}, 0 offen offset:{256 * i}")
        self.srd(S_B, S_WQ, 4718592)
        for j in range(18):
            a(f"buffer_load_dwordx4 v[{96 + 4 * j}:{99 + 4 * j}], v7, {B}, s{S_T0} offen {self.w_flags}")
            if j < 17:
                a(f"s_add_u32 s{S_T0}, s{S_T0}, 8192")
        a("s_barrier")
        a(f"s_load_dwordx2 s[{S_EP}:{S_EP + 1}], s[{S_WS}:{S_WS + 1}], {WS_EP}")
        self.srd(S_B, S_W1, 0 if "ffn" in self.skip else 5308416)
        a(f"s_mov_b32 s{S_T0}, s79")
        c("128 hidden columns into registers, the head group's last 16 of 144 into LDS")
        for j in range(18):
            a(f"s_mov_b32 m0, {L_W1 + 1024 * j - 256}")
            a(f"buffer_load_dwordx4 v[{168 + 4 * j}:{171 + 4 * j}], v16, {B}, s{S_T0} offen {self.w_flags}")
            self.set_exec(0x00030003, 0x00030003)
            a(f"buffer_load_dwordx4 v16, {B}, s{S_T0} offen offset:256 {self.w_flags} lds")
            a("s_mov_b64 exec, -1")
            if j < 17:
                a(f"s_add_u32 s{S_T0}, s{S_T0}, 9216")
        self.srd(S_W, S_WS, WS_SIZE)
        self.masks(2, 20, 21)
        a(f"s_mov_b32 s{S_L2E}, {LOG2E:#x}")
        a(f"s_mov_b32 s{S_ODD}, -1")
        a(f"s_mov_b32 s{S_ODD + 1}, 0")
        a("v_lshlrev_b32 v6, 4, v0")
        a("v_lshlrev_b32 v54, 3, v0")
        a(f"s_mul_i32 s{S_T1}, s{S_SPL}, 288")
        a("v_mul_u32_u24 v55, 72, v8")
        a(f"v_add_u32 v55, s{S_T1}, v55")
        a("s_waitcnt vmcnt(54)")
        self.stamp(1)
        c("layernorm with the reference's bf16 rounding points")
        for i in range(5):
            a(f"v_lshlrev_b32 v{20 + 2 * i}, 16, v{10 + i}")
            a(f"v_and_b32 v{21 + 2 * i}, 0xffff0000, v{10 + i}")
        a("v_add_f32 v30, v20, v21")
        for i in range(22, 30):
            a(f"v_add_f32 v30, v30, v{i}")
        self.allreduce("v_add_f32", 30, 31)
        a("v_mul_f32 v32, 0x3ae38e39, v30")
        for i in range(10):
            a(f"v_sub_f32 v{40 + i}, v{20 + i}, v32")
        a(f"v_cndmask_b32 v48, 0, v48, s[{S_ODD}:{S_ODD + 1}]")
        a(f"v_cndmask_b32 v49, 0, v49, s[{S_ODD}:{S_ODD + 1}]")
        a("v_mul_f32 v30, v40, v40")
        for i in range(41, 50):
            a(f"v_fmac_f32 v30, v{i}, v{i}")
        self.allreduce("v_add_f32", 30, 31)
        a("v_mul_f32 v33, 0x3ae38e39, v30")
        self.rbf(32)
        self.rbf(33)
        a("v_add_f32 v33, 0x3727c5ac, v33")
        self.rbf(33)
        a("v_sqrt_f32 v33, v33")
        for i in range(10):
            a(f"v_sub_f32 v{40 + i}, v{20 + i}, v32")
        self.rbf(33)
        a("v_rcp_f32 v34, v33")
        for i in range(10):
            self.rbf(40 + i)
        for i in range(10):
            a(f"v_mul_f32 v{20 + i}, v{40 + i}, v34")
        for i in range(10):
            a(f"v_fma_f32 v{40 + i}, -v{20 + i}, v33, v{40 + i}")
        for i in range(10):
            a(f"v_fmac_f32 v{20 + i}, v{40 + i}, v34")
        for i in range(10):
            a(f"v_cvt_pk_bf16_f32 v{20 + i}, v{20 + i}, v{20 + i}")
        for i in range(4):
            a(f"ds_write_b64 v54, v[{20 + 2 * i}:{21 + 2 * i}] offset:{L_XR + 512 * i}")
        a("s_mov_b32 exec_hi, 0")
        a(f"ds_write_b64 v54, v[28:29] offset:{L_XR + 2048}")
        a("s_mov_b64 exec, -1")
        for t in range(9):
            a(f"ds_read_b64 v[{60 + 2 * t}:{61 + 2 * t}], v55 offset:{L_XR + 8 * t}")
        self.stamp(2)
        a("s_waitcnt lgkmcnt(0)")
        self.load_tags()
        c("partial q over rows 72*split .. 72*split+71")
        for j in range(18):
            self.a_frag(84, 60 + j)
            a(f"s_waitcnt vmcnt({53 - j})")
            a("s_nop 0")
            self.mfma(80, 84, 96 + 4 * j, first=(j == 0))
        a(f"v_mov_b32 v93, s{S_TAGA}")
        a(f"v_mov_b32 v95, s{S_TAGB}")
        a(f"s_lshl_b32 s{S_T0}, s{S_SLOT}, 10")
        a(f"s_add_u32 s{S_T0}, s{S_T0}, {WS_QX:#x}")
        a(f"s_lshl_b32 s80, s{S_HEAD}, 13")
        a(f"s_add_u32 s80, s80, {WS_QX:#x}")
        a("s_add_u32 s81, s80, 4096")
        a("s_nop 1")
        self.pair_publish(80, S_T0)
        self.stamp(3)
        c("v18: first of the two columns this lane holds in the pair format")
        a("v_bfe_u32 v18, v0, 4, 1")
        a("v_lshlrev_b32 v18, 2, v18")
        a("v_lshrrev_b32 v19, 5, v0")
        a("v_lshl_add_u32 v18, v19, 1, v18")
        a("v_lshrrev_b32 v19, 1, v9")
        a("v_add_u32 v18, v18, v19")
        self.pair_prepoll("q", 80, 10, 0)
        self.pair_gather("q", [(80 + s // 4, (s % 4) * 1024) for s in range(8)], 0)
        a("v_lshlrev_b32 v19, 1, v18")
        a("v_cvt_pk_bf16_f32 v22, v20, v22")
        a(f"ds_write_b32 v19, v22 offset:{L_QB}")
        self.lds_flag_set(L_FL)
        self.stamp(4)
        if "ffn" in self.skip:
            self.frag_store_offset(17, 14, 19)
            self.tag_bytes(12)
            a("s_branch L_ffn_skip")
        c("partial FFN pre-activations over the same rows")
        for j in range(18):
            a(f"ds_read_b128 v[{96 + 4 * j}:{99 + 4 * j}], v6 offset:{L_W1 + 1024 * j}")
        a("s_waitcnt lgkmcnt(0)")
        for j in range(18):
            self.a_frag(84, 60 + j)
            a("s_nop 1")
            self.mfma(80, 84, 168 + 4 * j, first=(j == 0))
            self.mfma(88, 84, 96 + 4 * j, first=(j == 0))
        a(f"s_lshl_b32 s{S_T0}, s{S_SLOT}, 11")
        a(f"s_add_u32 s{S_T0}, s{S_T0}, {WS_HX:#x}")
        a(f"s_lshl_b32 s80, s{S_HEAD}, 14")
        a(f"s_add_u32 s80, s80, {WS_HX:#x}")
        for i in range(1, 4):
            a(f"s_add_u32 s{80 + i}, s80, {4096 * i}")
        a("s_nop 1")
        self.pair_publish(80, S_T0)
        a("s_nop 1")
        self.set_exec(0x00030003, 0x00030003)
        self.pair_publish(88, S_T0, 1024)
        a("s_mov_b64 exec, -1")
        c("w2 rows of this workgroup's 18 hidden columns")
        self.srd(S_B, S_W2, 5308416)
        a("v_mul_u32_u24 v7, 5760, v8")
        a("v_add_u32 v7, v7, v9")
        a(f"s_mul_i32 s{S_T0}, s{S_SLOT}, 20736")
        self.row_frag_loads(5, 7, 96)
        self.srd(S_A, S_B1, 9216)
        self.frag_store_offset(17, 14, 19)
        self.tag_bytes(12)
        a(f"s_mul_i32 s79, s{S_SPL}, 18")
        a(f"v_subrev_u32 v18, s79, v18")
        a(f"s_mul_i32 s79, s{S_SLOT}, 36")
        a(f"s_mov_b32 s{S_IT}, 0")
        a("L_hpage:")
        a("v_cmp_gt_u32 vcc, 18, v18")
        a("s_and_b64 exec, exec, vcc")
        a("s_cbranch_execz L_hpage_next")
        a("v_lshlrev_b32 v19, 1, v18")
        a(f"buffer_load_dword v56, v19, {A}, s79 offen")
        self.pair_gather("h", [(80 + s // 2, (s % 2) * 2048) for s in range(8)], 8)
        self.rbf(20)
        self.rbf(22)
        a("v_lshlrev_b32 v21, 16, v56")
        a("v_and_b32 v23, 0xffff0000, v56")
        a("v_add_f32 v20, v20, v21")
        a("v_add_f32 v21, v22, v23")
        self.rbf(20)
        self.rbf(21)
        self.gelu(20, 22, 23)
        self.gelu(21, 22, 23)
        a("v_lshlrev_b32 v19, 2, v18")
        a(f"ds_write_b64 v19, v[20:21] offset:{L_HR}")
        a("L_hpage_next:")
        a("s_mov_b64 exec, -1")
        a("v_add_u32 v18, 128, v18")
        for i in range(4):
            a(f"s_add_u32 s{80 + i}, s{80 + i}, 1024")
        a(f"s_add_u32 s{S_IT}, s{S_IT}, 1")
        a(f"s_cmp_lt_u32 s{S_IT}, 2")
        a("s_cbranch_scc1 L_hpage")
        a("v_mul_u32_u24 v19, 20, v8")
        for j in range(5):
            a(f"ds_read_b32 v{60 + j}, v19 offset:{L_HR + 4 * j}")
        a("s_waitcnt vmcnt(0) lgkmcnt(0)")
        self.row_frag_project(5, 60, 96, WS_YB)
        a("L_ffn_skip:")
        self.stamp(5)
        c("wo rows of this workgroup's 16 attention columns")
        self.srd(S_B, S_WO, 0 if "wo" in self.skip else 4718592)
        a("v_mul_u32_u24 v7, 4608, v8")
        a("v_add_u32 v7, v7, v9")
        a(f"s_mul_i32 s{S_T0}, s{S_SLOT}, 18432")
        self.row_frag_loads(4, 7, 96)
        self.tag_consts()
        self.stamp(6)
        c("softmax denominator: wait for the four wave maxima, then sum exp over the workgroup's scores")
        a("v_mov_b32 v24, 0")
        a("L_max_wait:")
        a(f"ds_read_b128 v[28:31], v24 offset:{L_MS}")
        a("s_waitcnt lgkmcnt(0)")
        a("v_max3_u32 v20, v28, v29, v30")
        a("v_max_u32 v20, v20, v31")
        a("v_cmp_eq_u32 vcc, -1, v20")
        a("s_and_b64 vcc, vcc, exec")
        a("s_cbranch_scc0 L_max_ok")
        self.retry("L_max_wait", 32)
        a("L_max_ok:")
        a("v_max3_f32 v32, v28, v29, v30")
        a("v_max_f32 v32, v32, v31")
        a(f"v_mul_f32_e64 v33, -v32, s{S_L2E}")
        a("v_mov_b32 v34, 0")
        a("v_mov_b32 v25, v6")
        a(f"s_mov_b32 s{S_IT}, 0")
        a("L_den:")
        a(f"ds_read_b128 v[36:39], v25 offset:{L_SC}")
        a("v_add_u32 v25, 1024, v25")
        a("s_waitcnt lgkmcnt(0)")
        for i in range(4):
            a(f"v_lshlrev_b32 v{40 + 2 * i}, 16, v{36 + i}")
            a(f"v_and_b32 v{41 + 2 * i}, 0xffff0000, v{36 + i}")
        for i in range(40, 48):
            a(f"v_fma_f32 v{i}, v{i}, s{S_L2E}, v33")
        for i in range(40, 48):
            a(f"v_exp_f32 v{i}, v{i}")
        a("s_nop 0")
        for i in range(40, 48):
            a(f"v_add_f32 v34, v34, v{i}")
        a(f"s_add_u32 s{S_IT}, s{S_IT}, 1")
        a(f"s_cmp_lt_u32 s{S_IT}, 8")
        a("s_cbranch_scc1 L_den")
        self.allreduce("v_add_f32", 34, 20)
        c("exchange {max, sum} inside the head and derive each wave's normalisation")
        a(f"v_mov_b32 v33, s{S_TAGA}")
        a(f"v_mov_b32 v35, s{S_TAGB}")
        a(f"s_lshl_b32 s{S_T0}, s{S_SLOT}, 4")
        a(f"s_add_u32 s{S_T0}, s{S_T0}, {WS_SX:#x}")
        a("s_mov_b64 exec, 1")
        a(f"buffer_store_dwordx4 v[32:35], v6, {W}, s{S_T0} offen sc1")
        a("s_mov_b64 exec, -1")
        a("v_and_b32 v25, 7, v0")
        a("v_lshlrev_b32 v25, 4, v25")
        a(f"s_lshl_b32 s{S_T0}, s{S_HEAD}, 7")
        a(f"s_add_u32 s{S_T0}, s{S_T0}, {WS_SX:#x}")
        a("L_swait:")
        a(f"buffer_load_dwordx4 v[40:43], v25, {W}, s{S_T0} offen sc1")
        a("s_waitcnt vmcnt(0)")
        a(f"v_xor_b32 v20, s{S_TAGA}, v41")
        a(f"v_xor_b32 v21, s{S_TAGB}, v43")
        a("v_or_b32 v20, v20, v21")
        a("v_cmp_ne_u32 vcc, 0, v20")
        a("s_and_b64 vcc, vcc, exec")
        a("s_cbranch_scc0 L_sdone")
        self.retry("L_swait", 32)
        a("L_sdone:")
        a("v_and_b32 v25, 3, v0")
        a("v_lshlrev_b32 v25, 2, v25")
        a(f"ds_read_b32 v45, v25 offset:{L_MS}")
        a("v_mov_b32 v44, v40")
        for r in (4, 2, 1):
            a("s_nop 1")
            a(f"v_max_f32_dpp v44, v44, v44 row_ror:{r} row_mask:0xf bank_mask:0xf")
        a("v_sub_f32 v40, v40, v44")
        a(f"v_mul_f32 v40, s{S_L2E}, v40")
        a("v_exp_f32 v40, v40")
        a("s_nop 0")
        a("v_mul_f32 v42, v42, v40")
        for r in (4, 2, 1):
            a("s_nop 1")
            a(f"v_add_f32_dpp v42, v42, v42 row_ror:{r} row_mask:0xf bank_mask:0xf")
        a("v_rcp_f32 v42, v42")
        a("s_waitcnt lgkmcnt(0)")
        a("v_sub_f32 v45, v45, v44")
        a(f"v_mul_f32 v45, s{S_L2E}, v45")
        a("v_exp_f32 v45, v45")
        a("s_nop 0")
        a("v_mul_f32 v45, v45, v42")
        a("s_mov_b64 exec, 15")
        a(f"ds_write_b32 v25, v45 offset:{L_SCL}")
        a("s_mov_b64 exec, -1")
        a(f"s_cmp_lt_u32 s{S_RED}, 36")
        a("s_cbranch_scc0 L_no_fin")
        if "yb" in self.skip:
            a("s_branch L_no_fin")
        c("reducer preparation: finish the FFN branch for 16 columns")
        a(f"s_lshl_b32 s80, s{S_RED}, 14")
        a(f"s_add_u32 s80, s80, {WS_YB:#x}")
        for i in range(1, 4):
            a(f"s_add_u32 s{80 + i}, s80, {4096 * i}")
        a("L_bwait:")
        for i in range(16):
            a(f"buffer_load_dwordx4 v[{176 + 4 * i}:{179 + 4 * i}], v6, {W}, s{80 + i // 4} offen offset:{(i % 4) * 1024} sc1")
        a("s_waitcnt vmcnt(0)")
        self.tag_check([176 + 4 * i for i in range(16)], 20, 21, 22)
        a("s_and_b64 exec, exec, vcc")
        a("s_cbranch_execz L_bdone")
        self.retry("L_bwait", 32)
        a("L_bdone:")
        a("s_mov_b64 exec, -1")
        self.srd(S_A, S_X, 1152)
        self.srd(S_B, S_B2, 1152)
        a(f"s_lshl_b32 s{S_T0}, s{S_RED}, 5")
        a("v_and_b32 v24, 3, v0")
        a("v_lshlrev_b32 v25, 3, v24")
        a(f"buffer_load_dwordx2 v[20:21], v25, {A}, s{S_T0} offen")
        a(f"buffer_load_dwordx2 v[22:23], v25, {B}, s{S_T0} offen")
        self.tag_strip(176, 240)
        for k in range(1, 16):
            for i in range(4):
                a(f"v_add_f32 v{176 + i}, v{176 + i}, v{176 + 4 * k + i}")
        self.quad_col_reduce([176, 177, 178, 179], [180, 181, 182, 183])
        for i in range(4):
            self.rbf(176 + i)
        a("s_waitcnt vmcnt(0)")
        for src, dst in ((20, 184), (22, 188)):
            a(f"v_lshlrev_b32 v{dst}, 16, v{src}")
            a(f"v_and_b32 v{dst + 1}, 0xffff0000, v{src}")
            a(f"v_lshlrev_b32 v{dst + 2}, 16, v{src + 1}")
            a(f"v_and_b32 v{dst + 3}, 0xffff0000, v{src + 1}")
        for i in range(4):
            a(f"v_add_f32 v{188 + i}, v{176 + i}, v{188 + i}")
        for i in range(4):
            self.rbf(188 + i)
        a("s_mov_b64 exec, 15")
        a(f"ds_write_b128 v6, v[184:187] offset:{L_FN}")
        a(f"ds_write_b128 v6, v[188:191] offset:{L_FN + 64}")
        a("s_mov_b64 exec, -1")
        a("L_no_fin:")
        self.lds_flag_set(L_FL + 4)
        self.stamp(7)
        c("gather this workgroup's 16 columns of o from the head's 32 waves, project through wo")
        a("v_lshlrev_b32 v25, 2, v9")
        a("v_lshl_add_u32 v25, v8, 4, v25")
        a(f"s_lshl_b32 s79, s{S_SLOT}, 11")
        a(f"s_add_u32 s79, s79, {WS_OX:#x}")
        self.lds_flag_wait("last", L_FL + 8, 2, 4)
        a("L_owait:")
        a(f"buffer_load_dwordx4 v[60:63], v25, {W}, s79 offen sc1")
        a(f"buffer_load_dwordx4 v[64:67], v25, {W}, s79 offen offset:1024 sc1")
        a("s_waitcnt vmcnt(0)")
        self.tag_check([60, 64], 20, 21, 22, quad=False)
        c("a source row is spread over lanes 16 apart: keep polling all four while one is missing")
        a("s_or_b32 vcc_lo, vcc_lo, vcc_hi")
        a(f"s_lshr_b32 s{S_T0}, vcc_lo, 16")
        a(f"s_or_b32 s{S_T0}, s{S_T0}, vcc_lo")
        a(f"s_and_b32 s{S_T0}, s{S_T0}, 0xffff")
        a("s_cbranch_scc0 L_odone")
        a(f"s_mul_i32 exec_lo, s{S_T0}, 0x10001")
        a("s_mov_b32 exec_hi, exec_lo")
        self.retry("L_owait", self.o_sleep)
        a("L_odone:")
        a("s_mov_b64 exec, -1")
        self.stamp(8)
        self.tag_strip(60, 68)
        for i in range(4):
            a(f"v_add_f32 v{60 + i}, v{60 + i}, v{64 + i}")
        for r in (8, 4, 2, 1):
            for i in range(4):
                a(f"v_add_f32_dpp v{60 + i}, v{60 + i}, v{60 + i} row_ror:{r} row_mask:0xf bank_mask:0xf")
        for i in range(4):
            a(f"v_cvt_pk_bf16_f32 v{60 + i}, v{60 + i}, v{60 + i}")
        self.row_frag_project(4, 60, 96, WS_YA)
        self.stamp(9)
        self.stamp_flush()
        a("s_endpgm")

    def build(self, header):
        a = self.a
        a("s_cmp_ge_u32 s2, 256")
        a("s_cbranch_scc1 L_exit")
        a("s_load_dwordx16 s[4:19], s[0:1], 0")
        a("s_load_dwordx8 s[20:27], s[0:1], 64")
        a("s_load_dwordx2 s[28:29], s[0:1], 96")
        a("v_lshrrev_b32 v1, 6, v0")
        a("v_and_b32 v0, 63, v0")
        a(f"v_readfirstlane_b32 s{S_WAVE}, v1")
        if self.xlocal:
            a(f"s_and_b32 s{S_T0}, s2, 7")
            a(f"s_lshl_b32 s{S_T0}, s{S_T0}, 5")
            a(f"s_lshr_b32 s{S_T1}, s2, 3")
            a(f"s_add_u32 s{S_SLOT}, s{S_T0}, s{S_T1}")
        else:
            a(f"s_mov_b32 s{S_SLOT}, s2")
        self.c("slot = 8 * head + split")
        a(f"s_and_b32 s{S_SPL}, s{S_SLOT}, 7")
        a(f"s_lshr_b32 s{S_HEAD}, s{S_SLOT}, 3")
        a(f"s_sub_u32 s{S_RED}, s2, 128")
        a(f"s_mov_b32 s{S_SPIN}, 0")
        if self.stamps:
            a("v_mov_b32 v250, 0")
            self.stamp(0)
        a(f"s_cmp_eq_u32 s{S_WAVE}, 4")
        a("s_cbranch_scc1 L_helper")
        self.streamer()
        self.helper()
        a("L_exit:")
        body = "\n".join(x if x.endswith(":") else "    " + x for x in self.L)
        k = NAME + "_kernel"
        return f"""{header}
; @launch grid=(256,1,1) block=(320,1,1) lds={LDS_BYTES}
.amdgcn_target "amdgcn-amd-amdhsa--gfx950"
.text
.globl {k}
.p2align 8
.type {k},@function
{k}:
{body}
    s_endpgm
.section .rodata,"a"
.p2align 6
.amdhsa_kernel {k}
  .amdhsa_next_free_vgpr 256
  .amdhsa_next_free_sgpr 96
  .amdhsa_accum_offset 256
  .amdhsa_group_segment_fixed_size 0
  .amdhsa_kernarg_size 104
  .amdhsa_user_sgpr_count 2
  .amdhsa_user_sgpr_kernarg_segment_ptr 1
  .amdhsa_system_sgpr_workgroup_id_x 1
  .amdhsa_float_denorm_mode_32 3
.end_amdhsa_kernel
"""


def generate(**kw):
    ref = open(f"cdna_kernels/{NAME}.s.ref").read().splitlines()
    head = []
    for line in ref:
        if line.startswith("; Override launch"):
            break
        head.append(line)
    return Gen(**kw).build("\n".join(head))


if __name__ == "__main__":
    kw = eval("dict(" + (sys.argv[2] if len(sys.argv) > 2 else "") + ")")
    out = sys.argv[1] if len(sys.argv) > 1 else f"cdna_kernels/{NAME}.s"
    open(out, "w").write(generate(**kw))
```

```python
import sys

NAME = "parallel_sum__mha_block_cached__dense_activation_gelu__decode"

WS_EP = 0
WS_SX = 0x1000
WS_QX = 0x10000
WS_HX = 0x50000
WS_OX = 0xD0000
WS_YA = 0x150000
WS_YB = 0x1E0000
WS_DBG = 0x280000
WS_SIZE = 0x300000

L_SC = 0
L_XR = 8192
L_QB = 10496
L_MS = 10752
L_FL = 10768
L_SCL = 10784
L_HR = 10816
L_FN = 10944
L_RP = 11072
L_W1 = 12288
LDS_BYTES = 86016

TAG_A = 0x9E3779B9
TAG_B = 0x7F4A7C15
LOG2E = 0x3FB8AA3B
SCALE = 0x3DB504F3

S_X, S_K, S_V, S_WQ, S_WO, S_W1, S_B1, S_W2, S_B2, S_OUT, S_DBG, S_WS = 4, 6, 8, 10, 12, 16, 18, 20, 22, 24, 26, 28
S_EP = 30
S_CUR = 32
S_SOFF, S_CNT, S_HB, S_IT = 36, 37, 38, 39
S_A = 40
S_B = 44
S_W = 48
S_WAVE, S_HEAD, S_SPL, S_SLOT = 52, 53, 54, 55
S_T0, S_T1 = 58, 59
S_ODD, S_BIT1 = 60, 62
S_SCALE, S_L2E = 64, 65
S_TAGA, S_TAGB = 66, 67
S_RED = 68
S_T2, S_T3 = 70, 71
S_BYTE = 72
S_ROW, S_POS = 73, 74
S_TS = 76
S_SPIN = 78
SPIN_CAP = 1 << 21
S_EX = 84

W = f"s[{S_W}:{S_W + 3}]"
A = f"s[{S_A}:{S_A + 3}]"
B = f"s[{S_B}:{S_B + 3}]"


class Gen:
    RING = 32
    D = 16

    def __init__(self, LA=5, waits="5", rot=256, w_flags="nt", stamps=False, pre_waits=6, pre=32, twist=0,
                 boost=0, boost_waits="5", xlocal=False, o_sleep=0, skip="", perturb=None, dbg_wg=128):
        self.LA, self.rot, self.w_flags, self.stamps, self.skip = LA, rot, w_flags, stamps, skip
        self.waits = [int(c, 16) for c in waits]
        self.boost, self.boost_waits = boost, [int(c, 16) for c in boost_waits]
        self.pre_n, self.pre, self.twist, self.xlocal, self.o_sleep = pre_waits, pre, twist, xlocal, o_sleep
        assert pre in (16, 32, 48) and all(2 <= n <= LA for n in self.waits + self.boost_waits) and LA < self.D
        self.perturb, self.dbg_wg = perturb, dbg_wg
        self.L = []

    def a(self, s):
        self.L.append(s)

    def c(self, s):
        self.L.append("; " + s)

    def srd(self, r, p, size):
        self.a(f"s_mov_b32 s{r}, s{p}")
        self.a(f"s_and_b32 s{r + 1}, s{p + 1}, 0xffff")
        self.a(f"s_mov_b32 s{r + 2}, {size:#x}")
        self.a(f"s_mov_b32 s{r + 3}, 0x20000")

    def set_exec(self, lo, hi):
        self.a(f"s_mov_b32 exec_lo, {lo:#x}")
        self.a(f"s_mov_b32 exec_hi, {hi:#x}")

    def stamp(self, idx):
        if not self.stamps:
            return
        self.a(f"s_memrealtime s[{S_TS}:{S_TS + 1}]")
        self.a("s_waitcnt lgkmcnt(0)")
        self.a(f"v_writelane_b32 v250, s{S_TS}, {idx}")

    def stamp_flush(self):
        if not self.stamps:
            return
        a = self.a
        a("s_mov_b64 exec, -1")
        if self.stamps == "dbg":
            lab = f"L_dbg_{len(self.L)}"
            a(f"s_cmp_eq_u32 s2, {self.dbg_wg}")
            a(f"s_cbranch_scc0 {lab}")
            a(f"s_and_b32 s{S_TS}, s{S_WAVE}, 3")
            a(f"s_cbranch_scc1 {lab}")
            self.srd(S_A, S_DBG, 256)
            a(f"v_readlane_b32 s{S_TS}, v250, 0")
            a("s_nop 1")
            a(f"v_subrev_u32 v250, s{S_TS}, v250")
            a(f"s_lshl_b32 s{S_TS}, s{S_WAVE}, 3")
            a("v_lshlrev_b32 v251, 2, v0")
            a("v_subrev_u32 v251, 8, v251")
            a("s_mov_b64 exec, 0x3fc")
            a(f"buffer_store_dword v250, v251, {A}, s{S_TS} offen")
            a(f"{lab}:")
            return
        a(f"s_mul_i32 s{S_TS}, s2, 5")
        a(f"s_add_u32 s{S_TS}, s{S_TS}, s{S_WAVE}")
        a(f"s_lshl_b32 s{S_TS}, s{S_TS}, 6")
        a(f"s_add_u32 s{S_TS}, s{S_TS}, {WS_DBG:#x}")
        a("v_lshlrev_b32 v251, 2, v0")
        a("s_mov_b64 exec, 0xffff")
        a(f"buffer_store_dword v250, v251, {W}, s{S_TS} offen")

    def retry(self, label, sleep=0):
        if sleep:
            self.a(f"s_sleep {sleep}")
        self.a(f"s_add_u32 s{S_SPIN}, s{S_SPIN}, 1")
        self.a(f"s_cmp_lt_u32 s{S_SPIN}, {SPIN_CAP:#x}")
        self.a(f"s_cbranch_scc1 {label}")

    def allreduce(self, op, v, t):
        a = self.a
        for r in (8, 4, 2, 1):
            a("s_nop 1")
            a(f"{op}_dpp v{v}, v{v}, v{v} row_ror:{r} row_mask:0xf bank_mask:0xf")
        for sw in ("v_permlane16_swap_b32", "v_permlane32_swap_b32"):
            a(f"v_mov_b32 v{t}, v{v}")
            a("s_nop 1")
            a(f"{sw} v{v}, v{t}")
            a(f"{op} v{v}, v{v}, v{t}")

    def quad_col_reduce(self, vs, ts):
        a = self.a
        for r in (4, 8):
            for v in vs:
                a(f"v_add_f32_dpp v{v}, v{v}, v{v} row_ror:{r} row_mask:0xf bank_mask:0xf")
        for sw in ("v_permlane16_swap_b32", "v_permlane32_swap_b32"):
            for v, t in zip(vs, ts):
                a(f"v_mov_b32 v{t}, v{v}")
            for v, t in zip(vs, ts):
                a(f"{sw} v{v}, v{t}")
            for v, t in zip(vs, ts):
                a(f"v_add_f32 v{v}, v{v}, v{t}")

    def rbf(self, v):
        self.a(f"v_cvt_pk_bf16_f32 v{v}, v{v}, v{v}")
        self.a(f"v_and_b32 v{v}, 0xffff0000, v{v}")

    def masks(self, m0, t0, t1):
        a = self.a
        a(f"v_and_b32 v{t0}, 1, v0")
        a(f"v_lshlrev_b32 v{t0}, 4, v{t0}")
        a(f"v_mov_b32 v{t1}, 0xffff")
        a(f"v_lshlrev_b32 v{t0}, v{t0}, v{t1}")
        a(f"v_bfe_u32 v{t1}, v0, 1, 2")
        for i in range(4):
            a(f"v_cmp_eq_u32 vcc, {i}, v{t1}")
            a("s_nop 1")
            a(f"v_cndmask_b32 v{m0 + i}, 0, v{t0}, vcc")

    def a_frag(self, dst, src):
        for d in range(4):
            self.a(f"v_and_b32 v{dst + d}, v{src}, v{2 + d}")

    def mfma(self, acc, fa, fb, first=False):
        c = "0" if first else f"v[{acc}:{acc + 3}]"
        self.a(f"v_mfma_f32_16x16x32_bf16 v[{acc}:{acc + 3}], v[{fa}:{fa + 3}], v[{fb}:{fb + 3}], {c}")

    def lds_flag_wait(self, name, off, sleep, value=1):
        a = self.a
        a(f"v_mov_b32 v20, {off}")
        a(f"L_{name}_wait:")
        a("ds_read_b32 v21, v20")
        a("s_waitcnt lgkmcnt(0)")
        a(f"v_readfirstlane_b32 s{S_T0}, v21")
        a(f"s_cmp_eq_u32 s{S_T0}, {value}")
        a(f"s_cbranch_scc1 L_{name}_ok")
        self.retry(f"L_{name}_wait", sleep)
        a(f"L_{name}_ok:")

    def lds_flag_set(self, off):
        self.a(f"v_mov_b32 v20, {off}")
        self.a("v_mov_b32 v21, 1")
        self.a("ds_write_b32 v20, v21")

    def load_tags(self):
        self.a(f"s_add_u32 s{S_TAGA}, s{S_EP}, {TAG_A:#x}")
        self.a(f"s_add_u32 s{S_TAGB}, s{S_EP + 1}, {TAG_B:#x}")

    def tag_bytes(self, t0):
        self.a(f"s_mov_b32 s{S_BYTE}, 0xff")
        for i in range(4):
            self.a(f"v_lshrrev_b32_e64 v{t0 + i}, {8 * i}, s{S_TAGA}")

    def tag_insert(self, r, t0):
        for i in range(4):
            self.a(f"v_bfi_b32 v{r + i}, s{S_BYTE}, v{t0 + i}, v{r + i}")

    def tag_consts(self):
        self.a(f"s_mov_b32 s{S_T2}, 0x0c0c0400")
        self.a(f"s_mov_b32 s{S_T3}, 0x04000c0c")

    def tag_check(self, granules, acc, t0, t1, quad=True):
        a = self.a
        for k, r in enumerate(granules):
            a(f"v_perm_b32 v{t0}, v{r + 1}, v{r}, s{S_T2}")
            a(f"v_perm_b32 v{t1}, v{r + 3}, v{r + 2}, s{S_T3}")
            a(f"v_or_b32 v{t0}, v{t0}, v{t1}")
            if k == 0:
                a(f"v_xor_b32 v{acc}, s{S_TAGA}, v{t0}")
            else:
                a(f"v_xor_b32 v{t0}, s{S_TAGA}, v{t0}")
                a(f"v_or_b32 v{acc}, v{acc}, v{t0}")
        if quad:
            for qp in ("[1,0,3,2]", "[2,3,0,1]"):
                a("s_nop 1")
                a(f"v_or_b32_dpp v{acc}, v{acc}, v{acc} quad_perm:{qp} row_mask:0xf bank_mask:0xf")
        a(f"v_cmp_ne_u32 vcc, 0, v{acc}")

    def tag_strip(self, lo, hi):
        for r in range(lo, hi):
            self.a(f"v_and_b32 v{r}, 0xffffff00, v{r}")

    def frag_store_offset(self, dst, shift, t):
        a = self.a
        a(f"v_bfe_u32 v{dst}, v0, 1, 3")
        a(f"v_lshlrev_b32 v{dst}, {shift}, v{dst}")
        a(f"v_and_b32 v{t}, 1, v0")
        a(f"v_lshl_add_u32 v{dst}, v{t}, 5, v{dst}")
        a(f"v_and_b32 v{t}, 16, v0")
        a(f"v_add_u32 v{dst}, v{dst}, v{t}")

    def slot(self, n):
        if self.D <= n < self.pre:
            return 96 + 4 * (n - self.D)
        return self.RING + 4 * (n % self.D)

    def issue(self, n, r=None):
        a = self.a
        if r is None:
            r = self.RING + 4 * (n % self.D)
        a(f"buffer_load_dwordx4 v[{r}:{r + 3}], v1, s[{S_CUR}:{S_CUR + 3}], s{S_SOFF} offen offset:{(n % 4) * 1024} nt")
        if n % 4 == 3:
            if self.twist:
                a(f"s_add_u32 s{S_ROW}, s{S_ROW}, 0x20000")
                a(f"s_and_b32 s{S_ROW}, s{S_ROW}, 0x7e0000")
                a(f"s_add_u32 s{S_POS}, s{S_POS}, {self.twist * 4096:#x}")
                a(f"s_and_b32 s{S_POS}, s{S_POS}, 0x1f000")
                a(f"s_or_b32 s{S_SOFF}, s{S_ROW}, s{S_POS}")
            else:
                a(f"s_add_u32 s{S_SOFF}, s{S_SOFF}, 0x20000")
                a(f"s_and_b32 s{S_SOFF}, s{S_SOFF}, 0x7fffff")
            a(f"s_or_b32 s{S_SOFF}, s{S_SOFF}, s{S_HB}")
            a(f"s_add_u32 s{S_CNT}, s{S_CNT}, 1")
            a(f"s_cmp_eq_u32 s{S_CNT}, 64")
            a(f"s_cselect_b32 s{S_CUR}, s{S_V}, s{S_CUR}")
            a(f"s_cselect_b32 s{S_CUR + 1}, s{S_V + 1}, s{S_CUR + 1}")

    def k_consume(self, j, r=None):
        a = self.a
        if r is None:
            r = self.RING + 4 * j
        p = 12 + j % 4
        a(f"v_dot2_f32_bf16 v{p}, v{r}, v6, 0")
        for d in range(1, 4):
            a(f"v_dot2_f32_bf16 v{p}, v{r + d}, v{6 + d}, v{p}")
        if j % 4 == 3:
            t = 16 + j // 4
            a("v_add_f32_dpp v12, v12, v12 row_ror:8 row_mask:0xf bank_mask:0x3")
            a("v_add_f32_dpp v12, v14, v14 row_ror:8 row_mask:0xf bank_mask:0xc")
            a("v_add_f32_dpp v13, v13, v13 row_ror:8 row_mask:0xf bank_mask:0x3")
            a("v_add_f32_dpp v13, v15, v15 row_ror:8 row_mask:0xf bank_mask:0xc")
            a(f"v_add_f32_dpp v{t}, v12, v12 row_shl:4 row_mask:0xf bank_mask:0x5")
            a("s_nop 0")
            a(f"v_add_f32_dpp v{t}, v13, v13 row_shr:4 row_mask:0xf bank_mask:0xa")
        if j == self.D - 1:
            qp1 = "quad_perm:[1,0,3,2] row_mask:0xf bank_mask:0xf"
            qp2 = "quad_perm:[2,3,0,1] row_mask:0xf bank_mask:0xf"
            for t in range(16, 20):
                a(f"v_add_f32_dpp v{t}, v{t}, v{t} {qp1}")
            a(f"v_cndmask_b32 v16, v16, v17, s[{S_ODD}:{S_ODD + 1}]")
            a(f"v_cndmask_b32 v18, v18, v19, s[{S_ODD}:{S_ODD + 1}]")
            a("s_nop 0")
            a(f"v_add_f32_dpp v16, v16, v16 {qp2}")
            a(f"v_add_f32_dpp v18, v18, v18 {qp2}")
            a(f"v_cndmask_b32 v20, v16, v18, s[{S_BIT1}:{S_BIT1 + 1}]")
            self.rbf(20)
            a(f"v_mul_f32 v20, s{S_SCALE}, v20")
            self.rbf(20)
            a("v_max_f32 v10, v10, v20")
            a("ds_write_b16_d16_hi v11, v20")
            a("v_add_u32 v11, 128, v11")

    def v_softmax(self):
        a = self.a
        a("s_waitcnt lgkmcnt(0)")
        a(f"v_fma_f32 v20, v245, s{S_L2E}, v23")
        a("v_exp_f32 v20, v20")
        a("s_nop 0")
        a("v_cvt_pk_bf16_f32 v241, v20, v20")

    def v_consume(self, j):
        a = self.a
        src = 4 * (j % 4) + j // 4
        for d in range(4):
            a(f"v_and_b32_dpp v{28 + d}, v241, v{2 + d} row_newbcast:{src} row_mask:0xf bank_mask:0xf")
        a("s_nop 1")
        self.mfma(24, 28, self.RING + 4 * j)

    def v_loop(self, label, waits, upto):
        a = self.a
        a(f"{label}:")
        self.v_softmax()
        for j in range(self.D):
            a(f"s_waitcnt vmcnt({waits[j % len(waits)] - 1})")
            self.issue(j + self.LA)
            self.v_consume(j)
            if j == 8:
                a("ds_read_u16_d16_hi v245, v22")
                a("v_add_u32 v22, 128, v22")
        a(f"s_add_u32 s{S_IT}, s{S_IT}, 1")
        a(f"s_cmp_lt_u32 s{S_IT}, {upto}")
        a(f"s_cbranch_scc1 {label}")

    def streamer(self):
        a, c, D, LA, pre = self.a, self.c, self.D, self.LA, self.pre
        c("---- streaming waves: K pass (scores), V pass (weighted sum) ----")
        a("v_lshlrev_b32 v1, 4, v0")
        a(f"s_lshl_b32 s{S_HB}, s{S_HEAD}, 23")
        a(f"s_lshl_b32 s{S_T0}, s{S_SPL}, 2")
        a(f"s_add_u32 s{S_T0}, s{S_T0}, s{S_WAVE}")
        a(f"s_lshl_b32 s{S_POS}, s{S_T0}, 12")
        a(f"s_mul_i32 s{S_ROW}, s{S_HEAD}, {self.rot * 1024}")
        a(f"s_and_b32 s{S_ROW}, s{S_ROW}, 0x7e0000")
        a(f"s_or_b32 s{S_SOFF}, s{S_ROW}, s{S_POS}")
        a(f"s_or_b32 s{S_SOFF}, s{S_SOFF}, s{S_HB}")
        a(f"s_mov_b32 s{S_CNT}, 0")
        c("s79: destination of this wave's o partial")
        a(f"s_lshl_b32 s79, s{S_T0}, 6")
        a(f"s_lshl_b32 s{S_T1}, s{S_HEAD}, 14")
        a(f"s_add_u32 s79, s79, s{S_T1}")
        a(f"s_add_u32 s79, s79, {WS_OX:#x}")
        a("s_waitcnt lgkmcnt(0)")
        self.srd(S_CUR, S_K, 0x10000000)
        a(f"s_and_b32 s{S_V + 1}, s{S_V + 1}, 0xffff")
        for n in range(self.pre_n):
            self.issue(n, self.slot(n))
        a(f"s_load_dwordx2 s[{S_EP}:{S_EP + 1}], s[{S_WS}:{S_WS + 1}], {WS_EP}")
        a("s_barrier")
        self.srd(S_W, S_WS, WS_SIZE)
        self.masks(2, 20, 21)
        a(f"s_mov_b32 s{S_ODD}, 0xaaaaaaaa")
        a(f"s_mov_b32 s{S_ODD + 1}, 0xaaaaaaaa")
        a(f"s_mov_b32 s{S_BIT1}, 0xcccccccc")
        a(f"s_mov_b32 s{S_BIT1 + 1}, 0xcccccccc")
        a(f"s_mov_b32 s{S_SCALE}, {SCALE:#x}")
        a(f"s_mov_b32 s{S_L2E}, {LOG2E:#x}")
        a("v_mov_b32 v10, 0xff800000")
        a(f"s_lshl_b32 s{S_T0}, s{S_WAVE}, 11")
        a(f"s_add_u32 s{S_T0}, s{S_T0}, {L_SC}")
        a(f"v_lshl_add_u32 v11, v0, 1, s{S_T0}")
        a("v_mov_b32 v22, v11")
        a("v_and_b32 v23, 15, v0")
        a("v_lshlrev_b32 v23, 4, v23")
        a("v_mov_b32 v245, 0")
        for i in range(24, 28):
            a(f"v_mov_b32 v{i}, 0")
        self.frag_store_offset(243, 11, 20)
        for n in range(self.pre_n, pre):
            a(f"s_waitcnt vmcnt({self.pre_n - 1})")
            self.issue(n, self.slot(n))
        self.stamp(1)
        self.lds_flag_wait("q", L_FL, 1)
        a(f"ds_read_b128 v[6:9], v23 offset:{L_QB}")
        self.load_tags()
        a("s_waitcnt lgkmcnt(0)")
        self.stamp(2)
        c("first K bodies: drain the prefetched loads")
        nre = min(LA, self.waits[0])
        done = 0
        for k in range(pre):
            a(f"s_waitcnt vmcnt({pre - 1 + done - k})")
            self.k_consume(k % D, self.slot(k))
            if k < nre or (k >= pre - (LA - nre)):
                self.issue(pre + done)
                done += 1
        assert done == LA
        a(f"s_mov_b32 s{S_IT}, {pre // D}")
        a("L_kloop:")
        for j in range(D):
            a(f"s_waitcnt vmcnt({self.waits[j % len(self.waits)] - 1})")
            self.issue(j + LA)
            self.k_consume(j)
        a(f"s_add_u32 s{S_IT}, s{S_IT}, 1")
        a(f"s_cmp_lt_u32 s{S_IT}, 16")
        a("s_cbranch_scc1 L_kloop")
        self.stamp(3)
        c("wave maximum of the scores")
        a("ds_read_u16_d16_hi v245, v22")
        a("v_add_u32 v22, 128, v22")
        self.allreduce("v_max_f32", 10, 20)
        a(f"v_mul_f32_e64 v23, -v10, s{S_L2E}")
        a("v_min_u32 v10, -2, v10")
        a(f"s_lshl_b32 s{S_T0}, s{S_WAVE}, 2")
        a(f"v_mov_b32 v240, s{S_T0}")
        a("s_mov_b64 exec, 1")
        a(f"ds_write_b32 v240, v10 offset:{L_MS}")
        a("s_mov_b64 exec, -1")
        a(f"s_mov_b32 s{S_IT}, 0")
        nb = max(self.boost - 1, 0)
        self.v_loop("L_vloop", self.waits, 15 - nb)
        if nb:
            self.v_loop("L_vboost", self.boost_waits, 15)
        c("last V body")
        lw = self.boost_waits if self.boost else self.waits
        self.v_softmax()
        for j in range(D):
            if j + LA < D:
                a(f"s_waitcnt vmcnt({lw[j % len(lw)] - 1})")
                self.issue(j + LA)
            else:
                a(f"s_waitcnt vmcnt({D - 1 - j})")
            self.v_consume(j)
            if j == 0:
                self.lds_flag_wait("scale", L_FL + 4, 2)
                a(f"ds_read_b32 v10, v240 offset:{L_SCL}")
                self.tag_bytes(6)
                self.tag_consts()
                c("v240 / s80..s83: gather offsets of the final reduction")
                a(f"s_lshl_b32 s{S_T1}, s{S_WAVE}, 10")
                a(f"v_lshl_add_u32 v240, v0, 4, s{S_T1}")
                a(f"s_lshl_b32 s{S_T1}, s{S_RED}, 14")
                a(f"s_add_u32 s80, s{S_T1}, {WS_YA:#x}")
                for i in range(1, 4):
                    a(f"s_add_u32 s{80 + i}, s80, {i * 4096}")
                a(f"v_mov_b32 v22, {L_FL + 8}")
                a("v_mov_b32 v23, 1")
                a("s_waitcnt lgkmcnt(0)")
        self.stamp(4)
        c("publish this wave's normalised partial o with this launch's tag in the low bytes")
        a("s_mov_b32 exec_hi, 0")
        a("s_nop 6")
        for i in range(24, 28):
            a(f"v_mul_f32 v{i}, v10, v{i}")
        self.tag_insert(24, 6)
        a(f"buffer_store_dwordx4 v[24:27], v243, {W}, s79 offen sc1")
        a("s_mov_b64 exec, 1")
        a("ds_add_u32 v22, v23")
        a("s_mov_b64 exec, -1")
        self.stamp(7)
        a(f"s_cmp_lt_u32 s{S_RED}, 36")
        a("s_cbranch_scc0 L_finish")
        c("---- final reduction of 16 output columns over all 256 workgroups ----")
        a("L_gather:")
        for i in range(4):
            a(f"buffer_load_dwordx4 v[{40 + 4 * i}:{43 + 4 * i}], v240, {W}, s{80 + i} offen sc1")
        a("s_waitcnt vmcnt(0)")
        self.tag_check([40, 44, 48, 52], 20, 21, 22)
        a("s_and_b64 exec, exec, vcc")
        a("s_cbranch_execz L_gathered")
        self.retry("L_gather", self.o_sleep)
        a("L_gathered:")
        a("s_mov_b64 exec, -1")
        self.stamp(8)
        self.tag_strip(40, 56)
        for i in range(4):
            a(f"v_add_f32 v{40 + i}, v{40 + i}, v{44 + i}")
        for i in range(4):
            a(f"v_add_f32 v{48 + i}, v{48 + i}, v{52 + i}")
        for i in range(4):
            a(f"v_add_f32 v{64 + i}, v{40 + i}, v{48 + i}")
        self.quad_col_reduce([64, 65, 66, 67], [60, 61, 62, 63])
        a(f"s_lshl_b32 s{S_T0}, s{S_WAVE}, 6")
        a(f"v_lshl_add_u32 v20, v0, 4, s{S_T0}")
        a("s_mov_b64 exec, 15")
        a(f"ds_write_b128 v20, v[64:67] offset:{L_RP}")
        a("s_waitcnt lgkmcnt(0)")
        a("s_barrier")
        a(f"s_cmp_eq_u32 s{S_WAVE}, 0")
        a("s_cbranch_scc0 L_finish")
        for w in range(4):
            a(f"ds_read_b128 v[{32 + 4 * w}:{35 + 4 * w}], v20 offset:{L_RP + w * 64}")
        a(f"ds_read_b128 v[48:51], v20 offset:{L_FN}")
        a(f"ds_read_b128 v[52:55], v20 offset:{L_FN + 64}")
        self.srd(S_A, S_OUT, 1152)
        a(f"s_lshl_b32 s{S_T0}, s{S_RED}, 5")
        a(f"v_lshl_add_u32 v21, v0, 3, s{S_T0}")
        a("s_waitcnt lgkmcnt(2)")
        for w in range(1, 4):
            for i in range(4):
                a(f"v_add_f32 v{32 + i}, v{32 + i}, v{32 + 4 * w + i}")
        for i in range(4):
            self.rbf(32 + i)
        a("s_waitcnt lgkmcnt(0)")
        for i in range(4):
            a(f"v_add_f32 v{32 + i}, v{48 + i}, v{32 + i}")
        for i in range(4):
            self.rbf(32 + i)
        for i in range(4):
            a(f"v_add_f32 v{32 + i}, v{32 + i}, v{52 + i}")
        if self.perturb:
            import struct
            bits = struct.unpack("<I", struct.pack("<f", self.perturb[0]))[0]
            a(f"s_cmp_lt_u32 s{S_RED}, {self.perturb[1]}")
            a(f"s_cselect_b32 s{S_T0}, {bits:#x}, 0")
            for i in range(4):
                a(f"v_add_f32 v{32 + i}, s{S_T0}, v{32 + i}")
        a("v_cvt_pk_bf16_f32 v32, v32, v33")
        a("v_cvt_pk_bf16_f32 v33, v34, v35")
        a(f"buffer_store_dwordx2 v[32:33], v21, {A}, 0 offen")
        a(f"s_cmp_eq_u32 s{S_RED}, 0")
        a("s_cbranch_scc0 L_finish")
        c("every workgroup has consumed the epoch words: advance them")
        a("s_mov_b64 exec, 1")
        a(f"v_mov_b32 v22, s{S_TAGA}")
        a(f"v_mov_b32 v23, s{S_TAGB}")
        a(f"buffer_store_dwordx2 v[22:23], v20, {W}, 0 offen offset:{WS_EP}")
        a("L_finish:")
        self.stamp(9)
        self.stamp_flush()
        a("s_endpgm")

    def pair_publish(self, acc, soff, imm=0):
        a = self.a
        a(f"v_cndmask_b32 v92, v{acc + 2}, v{acc}, s[{S_ODD}:{S_ODD + 1}]")
        a(f"v_cndmask_b32 v94, v{acc + 3}, v{acc + 1}, s[{S_ODD}:{S_ODD + 1}]")
        a(f"buffer_store_dwordx4 v[92:95], v6, {W}, s{soff} offen offset:{imm} sc1")

    def pair_prepoll(self, name, soff, shift, sleep):
        a = self.a
        a(f"v_lshlrev_b32 v52, {shift}, v0")
        a("s_mov_b64 exec, 0xff")
        a(f"L_{name}_pre:")
        a(f"buffer_load_dwordx4 v[20:23], v52, {W}, s{soff} offen sc1")
        a("s_waitcnt vmcnt(0)")
        a(f"v_xor_b32 v21, s{S_TAGA}, v21")
        a(f"v_xor_b32 v23, s{S_TAGB}, v23")
        a("v_or_b32 v21, v21, v23")
        a("v_cmp_ne_u32 vcc, 0, v21")
        a("s_and_b64 exec, exec, vcc")
        a(f"s_cbranch_execz L_{name}_seen")
        self.retry(f"L_{name}_pre", sleep)
        a(f"L_{name}_seen:")
        a("s_mov_b64 exec, -1")

    def pair_gather(self, name, srcs, sleep):
        a = self.a
        a(f"s_mov_b64 s[{S_EX}:{S_EX + 1}], exec")
        a(f"L_{name}_poll:")
        for s, (soff, imm) in enumerate(srcs):
            a(f"buffer_load_dwordx4 v[{20 + 4 * s}:{23 + 4 * s}], v6, {W}, s{soff} offen offset:{imm} sc1")
        a("s_waitcnt vmcnt(0)")
        for t, (first, tag) in enumerate(((21, S_TAGA), (23, S_TAGB))):
            rs = [first + 4 * s for s in range(8)]
            lo, hi = 52 + 2 * t, 53 + 2 * t
            for op, d in (("min", lo), ("max", hi)):
                a(f"v_{op}3_u32 v{d}, v{rs[0]}, v{rs[1]}, v{rs[2]}")
                a(f"v_{op}3_u32 v{d}, v{d}, v{rs[3]}, v{rs[4]}")
                a(f"v_{op}3_u32 v{d}, v{d}, v{rs[5]}, v{rs[6]}")
                a(f"v_{op}_u32 v{d}, v{d}, v{rs[7]}")
                a(f"v_xor_b32 v{d}, s{tag}, v{d}")
        a("v_or3_b32 v52, v52, v53, v54")
        a("v_or_b32 v52, v52, v55")
        a("v_cmp_ne_u32 vcc, 0, v52")
        a("s_and_b64 exec, exec, vcc")
        a(f"s_cbranch_execz L_{name}_done")
        self.retry(f"L_{name}_poll", sleep)
        a(f"L_{name}_done:")
        a(f"s_mov_b64 exec, s[{S_EX}:{S_EX + 1}]")
        for s in range(1, 8):
            a(f"v_add_f32 v20, v20, v{20 + 4 * s}")
            a(f"v_add_f32 v22, v22, v{22 + 4 * s}")

    def row_frag_loads(self, rows, voff, dst):
        a = self.a
        for j in range(rows):
            for b in range(4):
                r = dst + 4 * (5 * j + b)
                a(f"buffer_load_dwordx4 v[{r}:{r + 3}], v{voff}, {B}, s{S_T0} offen offset:{256 * b} {self.w_flags}")
            r = dst + 4 * (5 * j + 4)
            self.set_exec(0x00FF00FF, 0x00FF00FF)
            a(f"buffer_load_dwordx4 v[{r}:{r + 3}], v{voff}, {B}, s{S_T0} offen offset:1024 {self.w_flags}")
            a("s_mov_b64 exec, -1")
            if j < rows - 1:
                a(f"s_add_u32 s{S_T0}, s{S_T0}, 1152")

    def row_frag_project(self, rows, aval, src, base):
        a = self.a
        for j in range(rows):
            self.a_frag(84 + 4 * (j % 2), aval + j)
            a("s_nop 1")
            for b in range(5):
                self.mfma(40 + 4 * b, 84 + 4 * (j % 2), src + 4 * (5 * j + b), first=(j == 0))
        a(f"s_lshl_b32 s{S_T0}, s{S_SLOT}, 6")
        a(f"s_add_u32 s{S_T0}, s{S_T0}, {base:#x}")
        a("s_mov_b32 exec_hi, 0")
        a("s_nop 0")
        for b in range(5):
            self.tag_insert(40 + 4 * b, 12)
            if b == 4:
                a("s_mov_b32 exec_lo, 0x00ff00ff")
            if not (base == WS_YB and "yb" in self.skip):
                a(f"buffer_store_dwordx4 v[{40 + 4 * b}:{43 + 4 * b}], v17, {W}, s{S_T0} offen sc1")
            if b < 4:
                a(f"s_add_u32 s{S_T0}, s{S_T0}, 0x20000")
        a("s_mov_b64 exec, -1")

    def gelu(self, v, t0, t1):
        a = self.a
        a(f"v_mul_f32 v{t0}, v{v}, v{v}")
        a(f"v_mul_f32 v{t0}, v{t0}, v{v}")
        a(f"v_mov_b32 v{t1}, v{v}")
        a(f"v_fmac_f32 v{t1}, 0x3d372713, v{t0}")
        a(f"v_mul_f32 v{t1}, 0xc0135761, v{t1}")
        a(f"v_exp_f32 v{t1}, v{t1}")
        a("s_nop 0")
        a(f"v_add_f32 v{t1}, 1.0, v{t1}")
        a(f"v_rcp_f32 v{t1}, v{t1}")
        a("s_nop 0")
        a(f"v_mul_f32 v{v}, v{v}, v{t1}")
        a(f"v_cvt_pk_bf16_f32 v{v}, v{v}, v{v}")

    def helper(self):
        a, c = self.a, self.c
        a("L_helper:")
        c("---- helper wave: layernorm, q / FFN projections and their exchanges, output projection ----")
        a("v_lshlrev_b32 v1, 2, v0")
        a("v_lshrrev_b32 v8, 4, v0")
        a("v_and_b32 v9, 15, v0")
        a("v_lshlrev_b32 v9, 4, v9")
        a("v_mul_u32_u24 v7, 147456, v8")
        a("v_add_u32 v7, v7, v9")
        a("v_mul_u32_u24 v16, 165888, v8")
        a("v_add_u32 v16, v16, v9")
        a(f"s_mul_i32 s{S_T0}, s{S_SPL}, 589824")
        a(f"s_lshl_b32 s{S_T1}, s{S_HEAD}, 8")
        a(f"s_add_u32 s{S_T0}, s{S_T0}, s{S_T1}")
        a(f"s_mul_i32 s79, s{S_SPL}, 663552")
        a(f"s_mul_i32 s{S_T1}, s{S_HEAD}, 288")
        a(f"s_add_u32 s79, s79, s{S_T1}")
        for i in range(4):
            a(f"v_mov_b32 v{20 + i}, -1")
            a(f"v_mov_b32 v{24 + i}, 0")
        a("s_mov_b64 exec, 1")
        a(f"ds_write_b128 v1, v[20:23] offset:{L_MS}")
        a(f"ds_write_b128 v1, v[24:27] offset:{L_FL}")
        a(f"ds_write_b64 v1, v[24:25] offset:{L_HR + 72}")
        a("s_mov_b64 exec, -1")
        a("s_waitcnt lgkmcnt(0)")
        self.srd(S_A, S_X, 1152)
        for i in range(5):
            a(f"buffer_load_dword v{10 + i}, v1, {A}, 0 offen offset:{256 * i}")
        self.srd(S_B, S_WQ, 4718592)
        for j in range(18):
            a(f"buffer_load_dwordx4 v[{96 + 4 * j}:{99 + 4 * j}], v7, {B}, s{S_T0} offen {self.w_flags}")
            if j < 17:
                a(f"s_add_u32 s{S_T0}, s{S_T0}, 8192")
        a("s_barrier")
        a(f"s_load_dwordx2 s[{S_EP}:{S_EP + 1}], s[{S_WS}:{S_WS + 1}], {WS_EP}")
        self.srd(S_B, S_W1, 0 if "ffn" in self.skip else 5308416)
        a(f"s_mov_b32 s{S_T0}, s79")
        c("128 hidden columns into registers, the head group's last 16 of 144 into LDS")
        for j in range(18):
            a(f"s_mov_b32 m0, {L_W1 + 1024 * j - 256}")
            a(f"buffer_load_dwordx4 v[{168 + 4 * j}:{171 + 4 * j}], v16, {B}, s{S_T0} offen {self.w_flags}")
            self.set_exec(0x00030003, 0x00030003)
            a(f"buffer_load_dwordx4 v16, {B}, s{S_T0} offen offset:256 {self.w_flags} lds")
            a("s_mov_b64 exec, -1")
            if j < 17:
                a(f"s_add_u32 s{S_T0}, s{S_T0}, 9216")
        self.srd(S_W, S_WS, WS_SIZE)
        self.masks(2, 20, 21)
        a(f"s_mov_b32 s{S_L2E}, {LOG2E:#x}")
        a(f"s_mov_b32 s{S_ODD}, -1")
        a(f"s_mov_b32 s{S_ODD + 1}, 0")
        a("v_lshlrev_b32 v6, 4, v0")
        a("v_lshlrev_b32 v54, 3, v0")
        a(f"s_mul_i32 s{S_T1}, s{S_SPL}, 288")
        a("v_mul_u32_u24 v55, 72, v8")
        a(f"v_add_u32 v55, s{S_T1}, v55")
        a("s_waitcnt vmcnt(54)")
        self.stamp(1)
        c("layernorm with the reference's bf16 rounding points")
        for i in range(5):
            a(f"v_lshlrev_b32 v{20 + 2 * i}, 16, v{10 + i}")
            a(f"v_and_b32 v{21 + 2 * i}, 0xffff0000, v{10 + i}")
        a("v_add_f32 v30, v20, v21")
        for i in range(22, 30):
            a(f"v_add_f32 v30, v30, v{i}")
        self.allreduce("v_add_f32", 30, 31)
        a("v_mul_f32 v32, 0x3ae38e39, v30")
        for i in range(10):
            a(f"v_sub_f32 v{40 + i}, v{20 + i}, v32")
        a(f"v_cndmask_b32 v48, 0, v48, s[{S_ODD}:{S_ODD + 1}]")
        a(f"v_cndmask_b32 v49, 0, v49, s[{S_ODD}:{S_ODD + 1}]")
        a("v_mul_f32 v30, v40, v40")
        for i in range(41, 50):
            a(f"v_fmac_f32 v30, v{i}, v{i}")
        self.allreduce("v_add_f32", 30, 31)
        a("v_mul_f32 v33, 0x3ae38e39, v30")
        self.rbf(32)
        self.rbf(33)
        a("v_add_f32 v33, 0x3727c5ac, v33")
        self.rbf(33)
        a("v_sqrt_f32 v33, v33")
        for i in range(10):
            a(f"v_sub_f32 v{40 + i}, v{20 + i}, v32")
        self.rbf(33)
        a("v_rcp_f32 v34, v33")
        for i in range(10):
            self.rbf(40 + i)
        for i in range(10):
            a(f"v_mul_f32 v{20 + i}, v{40 + i}, v34")
        for i in range(10):
            a(f"v_fma_f32 v{40 + i}, -v{20 + i}, v33, v{40 + i}")
        for i in range(10):
            a(f"v_fmac_f32 v{20 + i}, v{40 + i}, v34")
        for i in range(10):
            a(f"v_cvt_pk_bf16_f32 v{20 + i}, v{20 + i}, v{20 + i}")
        for i in range(4):
            a(f"ds_write_b64 v54, v[{20 + 2 * i}:{21 + 2 * i}] offset:{L_XR + 512 * i}")
        a("s_mov_b32 exec_hi, 0")
        a(f"ds_write_b64 v54, v[28:29] offset:{L_XR + 2048}")
        a("s_mov_b64 exec, -1")
        for t in range(9):
            a(f"ds_read_b64 v[{60 + 2 * t}:{61 + 2 * t}], v55 offset:{L_XR + 8 * t}")
        self.stamp(2)
        a("s_waitcnt lgkmcnt(0)")
        self.load_tags()
        c("partial q over rows 72*split .. 72*split+71")
        for j in range(18):
            self.a_frag(84, 60 + j)
            a(f"s_waitcnt vmcnt({53 - j})")
            a("s_nop 0")
            self.mfma(80, 84, 96 + 4 * j, first=(j == 0))
        a(f"v_mov_b32 v93, s{S_TAGA}")
        a(f"v_mov_b32 v95, s{S_TAGB}")
        a(f"s_lshl_b32 s{S_T0}, s{S_SLOT}, 10")
        a(f"s_add_u32 s{S_T0}, s{S_T0}, {WS_QX:#x}")
        a(f"s_lshl_b32 s80, s{S_HEAD}, 13")
        a(f"s_add_u32 s80, s80, {WS_QX:#x}")
        a("s_add_u32 s81, s80, 4096")
        a("s_nop 1")
        self.pair_publish(80, S_T0)
        self.stamp(3)
        c("v18: first of the two columns this lane holds in the pair format")
        a("v_bfe_u32 v18, v0, 4, 1")
        a("v_lshlrev_b32 v18, 2, v18")
        a("v_lshrrev_b32 v19, 5, v0")
        a("v_lshl_add_u32 v18, v19, 1, v18")
        a("v_lshrrev_b32 v19, 1, v9")
        a("v_add_u32 v18, v18, v19")
        self.pair_prepoll("q", 80, 10, 0)
        self.pair_gather("q", [(80 + s // 4, (s % 4) * 1024) for s in range(8)], 0)
        a("v_lshlrev_b32 v19, 1, v18")
        a("v_cvt_pk_bf16_f32 v22, v20, v22")
        a(f"ds_write_b32 v19, v22 offset:{L_QB}")
        self.lds_flag_set(L_FL)
        self.stamp(4)
        if "ffn" in self.skip:
            self.frag_store_offset(17, 14, 19)
            self.tag_bytes(12)
            a("s_branch L_ffn_skip")
        c("partial FFN pre-activations over the same rows")
        for j in range(18):
            a(f"ds_read_b128 v[{96 + 4 * j}:{99 + 4 * j}], v6 offset:{L_W1 + 1024 * j}")
        a("s_waitcnt lgkmcnt(0)")
        for j in range(18):
            self.a_frag(84, 60 + j)
            a("s_nop 1")
            self.mfma(80, 84, 168 + 4 * j, first=(j == 0))
            self.mfma(88, 84, 96 + 4 * j, first=(j == 0))
        a(f"s_lshl_b32 s{S_T0}, s{S_SLOT}, 11")
        a(f"s_add_u32 s{S_T0}, s{S_T0}, {WS_HX:#x}")
        a(f"s_lshl_b32 s80, s{S_HEAD}, 14")
        a(f"s_add_u32 s80, s80, {WS_HX:#x}")
        for i in range(1, 4):
            a(f"s_add_u32 s{80 + i}, s80, {4096 * i}")
        a("s_nop 1")
        self.pair_publish(80, S_T0)
        a("s_nop 1")
        self.set_exec(0x00030003, 0x00030003)
        self.pair_publish(88, S_T0, 1024)
        a("s_mov_b64 exec, -1")
        c("w2 rows of this workgroup's 18 hidden columns")
        self.srd(S_B, S_W2, 5308416)
        a("v_mul_u32_u24 v7, 5760, v8")
        a("v_add_u32 v7, v7, v9")
        a(f"s_mul_i32 s{S_T0}, s{S_SLOT}, 20736")
        self.row_frag_loads(5, 7, 96)
        self.srd(S_A, S_B1, 9216)
        self.frag_store_offset(17, 14, 19)
        self.tag_bytes(12)
        a(f"s_mul_i32 s79, s{S_SPL}, 18")
        a(f"v_subrev_u32 v18, s79, v18")
        a(f"s_mul_i32 s79, s{S_SLOT}, 36")
        a(f"s_mov_b32 s{S_IT}, 0")
        a("L_hpage:")
        a("v_cmp_gt_u32 vcc, 18, v18")
        a("s_and_b64 exec, exec, vcc")
        a("s_cbranch_execz L_hpage_next")
        a("v_lshlrev_b32 v19, 1, v18")
        a(f"buffer_load_dword v56, v19, {A}, s79 offen")
        self.pair_gather("h", [(80 + s // 2, (s % 2) * 2048) for s in range(8)], 8)
        self.rbf(20)
        self.rbf(22)
        a("v_lshlrev_b32 v21, 16, v56")
        a("v_and_b32 v23, 0xffff0000, v56")
        a("v_add_f32 v20, v20, v21")
        a("v_add_f32 v21, v22, v23")
        self.rbf(20)
        self.rbf(21)
        self.gelu(20, 22, 23)
        self.gelu(21, 22, 23)
        a("v_lshlrev_b32 v19, 2, v18")
        a(f"ds_write_b64 v19, v[20:21] offset:{L_HR}")
        a("L_hpage_next:")
        a("s_mov_b64 exec, -1")
        a("v_add_u32 v18, 128, v18")
        for i in range(4):
            a(f"s_add_u32 s{80 + i}, s{80 + i}, 1024")
        a(f"s_add_u32 s{S_IT}, s{S_IT}, 1")
        a(f"s_cmp_lt_u32 s{S_IT}, 2")
        a("s_cbranch_scc1 L_hpage")
        a("v_mul_u32_u24 v19, 20, v8")
        for j in range(5):
            a(f"ds_read_b32 v{60 + j}, v19 offset:{L_HR + 4 * j}")
        a("s_waitcnt vmcnt(0) lgkmcnt(0)")
        self.row_frag_project(5, 60, 96, WS_YB)
        a("L_ffn_skip:")
        self.stamp(5)
        c("wo rows of this workgroup's 16 attention columns")
        self.srd(S_B, S_WO, 0 if "wo" in self.skip else 4718592)
        a("v_mul_u32_u24 v7, 4608, v8")
        a("v_add_u32 v7, v7, v9")
        a(f"s_mul_i32 s{S_T0}, s{S_SLOT}, 18432")
        self.row_frag_loads(4, 7, 96)
        self.tag_consts()
        self.stamp(6)
        c("softmax denominator: wait for the four wave maxima, then sum exp over the workgroup's scores")
        a("v_mov_b32 v24, 0")
        a("L_max_wait:")
        a(f"ds_read_b128 v[28:31], v24 offset:{L_MS}")
        a("s_waitcnt lgkmcnt(0)")
        a("v_max3_u32 v20, v28, v29, v30")
        a("v_max_u32 v20, v20, v31")
        a("v_cmp_eq_u32 vcc, -1, v20")
        a("s_and_b64 vcc, vcc, exec")
        a("s_cbranch_scc0 L_max_ok")
        self.retry("L_max_wait", 32)
        a("L_max_ok:")
        a("v_max3_f32 v32, v28, v29, v30")
        a("v_max_f32 v32, v32, v31")
        a(f"v_mul_f32_e64 v33, -v32, s{S_L2E}")
        a("v_mov_b32 v34, 0")
        a("v_mov_b32 v25, v6")
        a(f"s_mov_b32 s{S_IT}, 0")
        a("L_den:")
        a(f"ds_read_b128 v[36:39], v25 offset:{L_SC}")
        a("v_add_u32 v25, 1024, v25")
        a("s_waitcnt lgkmcnt(0)")
        for i in range(4):
            a(f"v_lshlrev_b32 v{40 + 2 * i}, 16, v{36 + i}")
            a(f"v_and_b32 v{41 + 2 * i}, 0xffff0000, v{36 + i}")
        for i in range(40, 48):
            a(f"v_fma_f32 v{i}, v{i}, s{S_L2E}, v33")
        for i in range(40, 48):
            a(f"v_exp_f32 v{i}, v{i}")
        a("s_nop 0")
        for i in range(40, 48):
            a(f"v_add_f32 v34, v34, v{i}")
        a(f"s_add_u32 s{S_IT}, s{S_IT}, 1")
        a(f"s_cmp_lt_u32 s{S_IT}, 8")
        a("s_cbranch_scc1 L_den")
        self.allreduce("v_add_f32", 34, 20)
        c("exchange {max, sum} inside the head and derive each wave's normalisation")
        a(f"v_mov_b32 v33, s{S_TAGA}")
        a(f"v_mov_b32 v35, s{S_TAGB}")
        a(f"s_lshl_b32 s{S_T0}, s{S_SLOT}, 4")
        a(f"s_add_u32 s{S_T0}, s{S_T0}, {WS_SX:#x}")
        a("s_mov_b64 exec, 1")
        a(f"buffer_store_dwordx4 v[32:35], v6, {W}, s{S_T0} offen sc1")
        a("s_mov_b64 exec, -1")
        a("v_and_b32 v25, 7, v0")
        a("v_lshlrev_b32 v25, 4, v25")
        a(f"s_lshl_b32 s{S_T0}, s{S_HEAD}, 7")
        a(f"s_add_u32 s{S_T0}, s{S_T0}, {WS_SX:#x}")
        a("L_swait:")
        a(f"buffer_load_dwordx4 v[40:43], v25, {W}, s{S_T0} offen sc1")
        a("s_waitcnt vmcnt(0)")
        a(f"v_xor_b32 v20, s{S_TAGA}, v41")
        a(f"v_xor_b32 v21, s{S_TAGB}, v43")
        a("v_or_b32 v20, v20, v21")
        a("v_cmp_ne_u32 vcc, 0, v20")
        a("s_and_b64 vcc, vcc, exec")
        a("s_cbranch_scc0 L_sdone")
        self.retry("L_swait", 32)
        a("L_sdone:")
        a("v_and_b32 v25, 3, v0")
        a("v_lshlrev_b32 v25, 2, v25")
        a(f"ds_read_b32 v45, v25 offset:{L_MS}")
        a("v_mov_b32 v44, v40")
        for r in (4, 2, 1):
            a("s_nop 1")
            a(f"v_max_f32_dpp v44, v44, v44 row_ror:{r} row_mask:0xf bank_mask:0xf")
        a("v_sub_f32 v40, v40, v44")
        a(f"v_mul_f32 v40, s{S_L2E}, v40")
        a("v_exp_f32 v40, v40")
        a("s_nop 0")
        a("v_mul_f32 v42, v42, v40")
        for r in (4, 2, 1):
            a("s_nop 1")
            a(f"v_add_f32_dpp v42, v42, v42 row_ror:{r} row_mask:0xf bank_mask:0xf")
        a("v_rcp_f32 v42, v42")
        a("s_waitcnt lgkmcnt(0)")
        a("v_sub_f32 v45, v45, v44")
        a(f"v_mul_f32 v45, s{S_L2E}, v45")
        a("v_exp_f32 v45, v45")
        a("s_nop 0")
        a("v_mul_f32 v45, v45, v42")
        a("s_mov_b64 exec, 15")
        a(f"ds_write_b32 v25, v45 offset:{L_SCL}")
        a("s_mov_b64 exec, -1")
        a(f"s_cmp_lt_u32 s{S_RED}, 36")
        a("s_cbranch_scc0 L_no_fin")
        if "yb" in self.skip:
            a("s_branch L_no_fin")
        c("reducer preparation: finish the FFN branch for 16 columns")
        a(f"s_lshl_b32 s80, s{S_RED}, 14")
        a(f"s_add_u32 s80, s80, {WS_YB:#x}")
        for i in range(1, 4):
            a(f"s_add_u32 s{80 + i}, s80, {4096 * i}")
        a("L_bwait:")
        for i in range(16):
            a(f"buffer_load_dwordx4 v[{176 + 4 * i}:{179 + 4 * i}], v6, {W}, s{80 + i // 4} offen offset:{(i % 4) * 1024} sc1")
        a("s_waitcnt vmcnt(0)")
        self.tag_check([176 + 4 * i for i in range(16)], 20, 21, 22)
        a("s_and_b64 exec, exec, vcc")
        a("s_cbranch_execz L_bdone")
        self.retry("L_bwait", 32)
        a("L_bdone:")
        a("s_mov_b64 exec, -1")
        self.srd(S_A, S_X, 1152)
        self.srd(S_B, S_B2, 1152)
        a(f"s_lshl_b32 s{S_T0}, s{S_RED}, 5")
        a("v_and_b32 v24, 3, v0")
        a("v_lshlrev_b32 v25, 3, v24")
        a(f"buffer_load_dwordx2 v[20:21], v25, {A}, s{S_T0} offen")
        a(f"buffer_load_dwordx2 v[22:23], v25, {B}, s{S_T0} offen")
        self.tag_strip(176, 240)
        for k in range(1, 16):
            for i in range(4):
                a(f"v_add_f32 v{176 + i}, v{176 + i}, v{176 + 4 * k + i}")
        self.quad_col_reduce([176, 177, 178, 179], [180, 181, 182, 183])
        for i in range(4):
            self.rbf(176 + i)
        a("s_waitcnt vmcnt(0)")
        for src, dst in ((20, 184), (22, 188)):
            a(f"v_lshlrev_b32 v{dst}, 16, v{src}")
            a(f"v_and_b32 v{dst + 1}, 0xffff0000, v{src}")
            a(f"v_lshlrev_b32 v{dst + 2}, 16, v{src + 1}")
            a(f"v_and_b32 v{dst + 3}, 0xffff0000, v{src + 1}")
        for i in range(4):
            a(f"v_add_f32 v{188 + i}, v{176 + i}, v{188 + i}")
        for i in range(4):
            self.rbf(188 + i)
        a("s_mov_b64 exec, 15")
        a(f"ds_write_b128 v6, v[184:187] offset:{L_FN}")
        a(f"ds_write_b128 v6, v[188:191] offset:{L_FN + 64}")
        a("s_mov_b64 exec, -1")
        a("L_no_fin:")
        self.lds_flag_set(L_FL + 4)
        self.stamp(7)
        c("gather this workgroup's 16 columns of o from the head's 32 waves, project through wo")
        a("v_lshlrev_b32 v25, 2, v9")
        a("v_lshl_add_u32 v25, v8, 4, v25")
        a(f"s_lshl_b32 s79, s{S_SLOT}, 11")
        a(f"s_add_u32 s79, s79, {WS_OX:#x}")
        self.lds_flag_wait("last", L_FL + 8, 2, 4)
        a("L_owait:")
        a(f"buffer_load_dwordx4 v[60:63], v25, {W}, s79 offen sc1")
        a(f"buffer_load_dwordx4 v[64:67], v25, {W}, s79 offen offset:1024 sc1")
        a("s_waitcnt vmcnt(0)")
        self.tag_check([60, 64], 20, 21, 22, quad=False)
        c("a source row is spread over lanes 16 apart: keep polling all four while one is missing")
        a("s_or_b32 vcc_lo, vcc_lo, vcc_hi")
        a(f"s_lshr_b32 s{S_T0}, vcc_lo, 16")
        a(f"s_or_b32 s{S_T0}, s{S_T0}, vcc_lo")
        a(f"s_and_b32 s{S_T0}, s{S_T0}, 0xffff")
        a("s_cbranch_scc0 L_odone")
        a(f"s_mul_i32 exec_lo, s{S_T0}, 0x10001")
        a("s_mov_b32 exec_hi, exec_lo")
        self.retry("L_owait", self.o_sleep)
        a("L_odone:")
        a("s_mov_b64 exec, -1")
        self.stamp(8)
        self.tag_strip(60, 68)
        for i in range(4):
            a(f"v_add_f32 v{60 + i}, v{60 + i}, v{64 + i}")
        for r in (8, 4, 2, 1):
            for i in range(4):
                a(f"v_add_f32_dpp v{60 + i}, v{60 + i}, v{60 + i} row_ror:{r} row_mask:0xf bank_mask:0xf")
        for i in range(4):
            a(f"v_cvt_pk_bf16_f32 v{60 + i}, v{60 + i}, v{60 + i}")
        self.row_frag_project(4, 60, 96, WS_YA)
        self.stamp(9)
        self.stamp_flush()
        a("s_endpgm")

    def build(self, header):
        a = self.a
        a("s_cmp_ge_u32 s2, 256")
        a("s_cbranch_scc1 L_exit")
        a("s_load_dwordx16 s[4:19], s[0:1], 0")
        a("s_load_dwordx8 s[20:27], s[0:1], 64")
        a("s_load_dwordx2 s[28:29], s[0:1], 96")
        a("v_lshrrev_b32 v1, 6, v0")
        a("v_and_b32 v0, 63, v0")
        a(f"v_readfirstlane_b32 s{S_WAVE}, v1")
        if self.xlocal:
            a(f"s_and_b32 s{S_T0}, s2, 7")
            a(f"s_lshl_b32 s{S_T0}, s{S_T0}, 5")
            a(f"s_lshr_b32 s{S_T1}, s2, 3")
            a(f"s_add_u32 s{S_SLOT}, s{S_T0}, s{S_T1}")
        else:
            a(f"s_mov_b32 s{S_SLOT}, s2")
        self.c("slot = 8 * head + split")
        a(f"s_and_b32 s{S_SPL}, s{S_SLOT}, 7")
        a(f"s_lshr_b32 s{S_HEAD}, s{S_SLOT}, 3")
        a(f"s_sub_u32 s{S_RED}, s2, 128")
        a(f"s_mov_b32 s{S_SPIN}, 0")
        if self.stamps:
            a("v_mov_b32 v250, 0")
            self.stamp(0)
        a(f"s_cmp_eq_u32 s{S_WAVE}, 4")
        a("s_cbranch_scc1 L_helper")
        self.streamer()
        self.helper()
        a("L_exit:")
        body = "\n".join(x if x.endswith(":") else "    " + x for x in self.L)
        k = NAME + "_kernel"
        return f"""{header}
; @launch grid=(256,1,1) block=(320,1,1) lds={LDS_BYTES}
.amdgcn_target "amdgcn-amd-amdhsa--gfx950"
.text
.globl {k}
.p2align 8
.type {k},@function
{k}:
{body}
    s_endpgm
.section .rodata,"a"
.p2align 6
.amdhsa_kernel {k}
  .amdhsa_next_free_vgpr 256
  .amdhsa_next_free_sgpr 96
  .amdhsa_accum_offset 256
  .amdhsa_group_segment_fixed_size 0
  .amdhsa_kernarg_size 104
  .amdhsa_user_sgpr_count 2
  .amdhsa_user_sgpr_kernarg_segment_ptr 1
  .amdhsa_system_sgpr_workgroup_id_x 1
  .amdhsa_float_denorm_mode_32 3
.end_amdhsa_kernel
"""


def generate(**kw):
    ref = open(f"cdna_kernels/{NAME}.s.ref").read().splitlines()
    head = []
    for line in ref:
        if line.startswith("; Override launch"):
            break
        head.append(line)
    return Gen(**kw).build("\n".join(head))


if __name__ == "__main__":
    kw = eval("dict(" + (sys.argv[2] if len(sys.argv) > 2 else "") + ")")
    out = sys.argv[1] if len(sys.argv) > 1 else f"cdna_kernels/{NAME}.s"
    open(out, "w").write(generate(**kw))
```

```python
import struct
import sys

NAME = "parallel_sum__mha_block_cached__dense_activation_gelu__decode"

WS_EP = 0
WS_SX = 0x1000
WS_IX = 0x2000
WS_LX = 0x3000
WS_PX = 0x4000
WS_QX = 0x10000
WS_HX = 0x30000
WS_OX = 0x60000
WS_YA = 0x80000
WS_DBG = 0x180000
WS_SIZE = 0x200000

L_SC = 0
L_XR = 8192
L_QB = 10496
L_MS = 10752
L_FL = 10768
L_SCL = 10784
L_HR = 10816
L_RP = 15360
L_HS = 11264
L_OP = 12288
L_PR = 14336

TAG_A = 0x9E3779B9
TAG_B = 0x7F4A7C15
LOG2E = 0x3FB8AA3B
SCALE = 0x3DB504F3

S_X, S_K, S_V, S_WQ, S_WO, S_W1, S_B1, S_W2, S_B2, S_OUT, S_DBG, S_WS = 4, 6, 8, 10, 12, 16, 18, 20, 22, 24, 26, 28
S_EP = 30
S_CUR = 32
S_SOFF, S_CNT, S_HB, S_IT = 36, 37, 38, 39
S_A = 40
S_B = 44
S_W = 48
S_WAVE, S_HEAD, S_SPL, S_SLOT = 52, 53, 54, 55
S_T0, S_T1 = 58, 59
S_ODD, S_BIT1 = 60, 62
S_SCALE, S_L2E = 64, 65
S_TAGA, S_TAGB = 66, 67
S_RED = 68
S_T2, S_T3 = 70, 71
S_ROW, S_POS = 73, 74
S_TS = 76
S_SPIN = 78
SPIN_CAP = 1 << 21
S_M5, S_M4 = 88, 90
S_OWN, S_PREV, S_LINE = 92, 93, 94
S_XCC, S_UNI, S_LEAD = 56, 57, 69
S_NIB = 84

W = f"s[{S_W}:{S_W + 3}]"
A = f"s[{S_A}:{S_A + 3}]"
B = f"s[{S_B}:{S_B + 3}]"


def f32(x):
    return struct.unpack("<I", struct.pack("<f", x))[0]


class Gen:
    RING = 32
    D = 16

    def __init__(self, LA=5, waits="5", rot=256, w_flags="nt", stamps=False, pre_waits=6, pre=32, twist=0,
                 boost=0, boost_waits="5", xlocal=True, o_sleep=0, skip="", perturb=None, dbg_wg=128, lds=86016,
                 fc=False, l0=16, gain=1.5, l_end=32, fc_stop=480, fc_sleep=32, g2=0.0, typ=12, par=0, burst=0, fast=True, early=2, warm=True, wide=False):
        self.LA, self.rot, self.w_flags, self.stamps, self.skip = LA, rot, w_flags, stamps, skip
        self.waits = [int(c, 16) for c in waits]
        self.boost, self.boost_waits = boost, [int(c, 16) for c in boost_waits]
        self.pre_n, self.pre, self.twist, self.xlocal, self.o_sleep = pre_waits, pre, twist, xlocal, o_sleep
        assert pre in (16, 32, 48) and all(2 <= n <= LA for n in self.waits + self.boost_waits) and LA < self.D
        self.perturb, self.dbg_wg, self.lds = perturb, dbg_wg, lds
        self.fc, self.l0, self.gain, self.l_end, self.fc_stop, self.fc_sleep = fc, l0, gain, l_end, fc_stop, fc_sleep
        self.g2, self.typ, self.par, self.burst, self.fast, self.early = g2, typ, par, burst, fast, early
        self.warm, self.wide = warm, wide
        self.nred = 18 if wide else 36
        self.nlab = 0
        self.L = []

    def a(self, s):
        self.L.append(s)

    def c(self, s):
        self.L.append("; " + s)

    def srd(self, r, p, size):
        self.a(f"s_mov_b32 s{r}, s{p}")
        self.a(f"s_and_b32 s{r + 1}, s{p + 1}, 0xffff")
        self.a(f"s_mov_b32 s{r + 2}, {size:#x}")
        self.a(f"s_mov_b32 s{r + 3}, 0x20000")

    def set_exec(self, lo, hi):
        self.a(f"s_mov_b32 exec_lo, {lo:#x}")
        self.a(f"s_mov_b32 exec_hi, {hi:#x}")

    def stamp(self, idx):
        if not self.stamps:
            return
        self.a(f"s_memrealtime s[{S_TS}:{S_TS + 1}]")
        self.a("s_waitcnt lgkmcnt(0)")
        self.a(f"v_writelane_b32 v250, s{S_TS}, {idx}")

    def stamp_flush(self):
        if not self.stamps:
            return
        a = self.a
        a("s_mov_b64 exec, -1")
        if self.stamps == "dbg":
            lab = f"L_dbg_{len(self.L)}"
            a(f"s_cmp_eq_u32 s2, {self.dbg_wg}")
            a(f"s_cbranch_scc0 {lab}")
            a(f"s_and_b32 s{S_TS}, s{S_WAVE}, 3")
            a(f"s_cbranch_scc1 {lab}")
            self.srd(S_A, S_DBG, 256)
            a(f"v_readlane_b32 s{S_TS}, v250, 0")
            a("s_nop 1")
            a(f"v_subrev_u32 v250, s{S_TS}, v250")
            a(f"s_lshl_b32 s{S_TS}, s{S_WAVE}, 3")
            a("v_lshlrev_b32 v251, 2, v0")
            a("v_subrev_u32 v251, 8, v251")
            a("s_mov_b64 exec, 0x3fc")
            a(f"buffer_store_dword v250, v251, {A}, s{S_TS} offen")
            a(f"{lab}:")
            return
        a(f"s_mul_i32 s{S_TS}, s2, 5")
        a(f"s_add_u32 s{S_TS}, s{S_TS}, s{S_WAVE}")
        a(f"s_lshl_b32 s{S_TS}, s{S_TS}, 6")
        a(f"s_add_u32 s{S_TS}, s{S_TS}, {WS_DBG:#x}")
        a("v_lshlrev_b32 v251, 2, v0")
        a("s_mov_b64 exec, 0xffff")
        a(f"buffer_store_dword v250, v251, {W}, s{S_TS} offen")

    def retry(self, label, sleep=0):
        if sleep:
            self.a(f"s_sleep {sleep}")
        self.a(f"s_add_u32 s{S_SPIN}, s{S_SPIN}, 1")
        self.a(f"s_cmp_lt_u32 s{S_SPIN}, {SPIN_CAP:#x}")
        self.a(f"s_cbranch_scc1 {label}")

    def allreduce(self, op, v, t):
        a = self.a
        for r in (8, 4, 2, 1):
            a("s_nop 1")
            a(f"{op}_dpp v{v}, v{v}, v{v} row_ror:{r} row_mask:0xf bank_mask:0xf")
        for sw in ("v_permlane16_swap_b32", "v_permlane32_swap_b32"):
            a(f"v_mov_b32 v{t}, v{v}")
            a("s_nop 1")
            a(f"{sw} v{v}, v{t}")
            a(f"{op} v{v}, v{v}, v{t}")

    def quad_col_reduce(self, vs, ts, rors=(4, 8)):
        a = self.a
        for r in rors:
            for v in vs:
                a(f"v_add_f32_dpp v{v}, v{v}, v{v} row_ror:{r} row_mask:0xf bank_mask:0xf")
        for sw in ("v_permlane16_swap_b32", "v_permlane32_swap_b32"):
            for v, t in zip(vs, ts):
                a(f"v_mov_b32 v{t}, v{v}")
            for v, t in zip(vs, ts):
                a(f"{sw} v{v}, v{t}")
            for v, t in zip(vs, ts):
                a(f"v_add_f32 v{v}, v{v}, v{t}")

    def rbf(self, v):
        self.a(f"v_cvt_pk_bf16_f32 v{v}, v{v}, v{v}")
        self.a(f"v_and_b32 v{v}, 0xffff0000, v{v}")

    def masks(self, m0, t0, t1):
        a = self.a
        a(f"v_and_b32 v{t0}, 1, v0")
        a(f"v_lshlrev_b32 v{t0}, 4, v{t0}")
        a(f"v_mov_b32 v{t1}, 0xffff")
        a(f"v_lshlrev_b32 v{t0}, v{t0}, v{t1}")
        a(f"v_bfe_u32 v{t1}, v0, 1, 2")
        for i in range(4):
            a(f"v_cmp_eq_u32 vcc, {i}, v{t1}")
            a("s_nop 1")
            a(f"v_cndmask_b32 v{m0 + i}, 0, v{t0}, vcc")

    def a_frag(self, dst, src):
        for d in range(4):
            self.a(f"v_and_b32 v{dst + d}, v{src}, v{2 + d}")

    def mfma(self, acc, fa, fb, first=False):
        c = "0" if first else f"v[{acc}:{acc + 3}]"
        self.a(f"v_mfma_f32_16x16x32_bf16 v[{acc}:{acc + 3}], v[{fa}:{fa + 3}], v[{fb}:{fb + 3}], {c}")

    def lds_flag_wait(self, name, off, sleep, value=1):
        a = self.a
        a(f"v_mov_b32 v20, {off}")
        a(f"L_{name}_wait:")
        a("ds_read_b32 v21, v20")
        a("s_waitcnt lgkmcnt(0)")
        a(f"v_readfirstlane_b32 s{S_T0}, v21")
        a(f"s_cmp_eq_u32 s{S_T0}, {value}")
        a(f"s_cbranch_scc1 L_{name}_ok")
        self.retry(f"L_{name}_wait", sleep)
        a(f"L_{name}_ok:")

    def lds_flag_set(self, off):
        self.a(f"v_mov_b32 v20, {off}")
        self.a("v_mov_b32 v21, 1")
        self.a("ds_write_b32 v20, v21")

    def load_tags(self):
        a = self.a
        a(f"s_add_u32 s{S_TAGA}, s{S_EP}, {TAG_A:#x}")
        a(f"s_add_u32 s{S_TAGB}, s{S_EP + 1}, {TAG_B:#x}")
        for i in range(4):
            a(f"s_lshr_b32 s{S_NIB + i}, s{S_TAGA}, {4 * i}")

    def tag_insert(self, r):
        for i in range(4):
            self.a(f"v_bfi_b32 v{r + i}, 15, s{S_NIB + i}, v{r + i}")

    def tag_check(self, granules, acc, t, quad=False, octet=False):
        a = self.a
        for k, r in enumerate(granules):
            for i in range(4):
                a(f"v_xor_b32 v{t + i}, s{S_NIB + i}, v{r + i}")
            a(f"v_or3_b32 v{t}, v{t}, v{t + 1}, v{t + 2}")
            if k == 0:
                a(f"v_or_b32 v{acc}, v{t}, v{t + 3}")
            else:
                a(f"v_or3_b32 v{acc}, v{acc}, v{t}, v{t + 3}")
        a(f"v_and_b32 v{acc}, 15, v{acc}")
        if quad:
            for qp in ("[1,0,3,2]", "[2,3,0,1]"):
                a("s_nop 1")
                a(f"v_or_b32_dpp v{acc}, v{acc}, v{acc} quad_perm:{qp} row_mask:0xf bank_mask:0xf")
        if octet:
            a("s_nop 1")
            a(f"v_or_b32_dpp v{acc}, v{acc}, v{acc} row_half_mirror row_mask:0xf bank_mask:0xf")
        a(f"v_cmp_ne_u32 vcc, 0, v{acc}")

    def tag_strip(self, lo, hi):
        for r in range(lo, hi):
            self.a(f"v_and_b32 v{r}, -16, v{r}")

    def frag_store_offset(self, dst, shift, t):
        a = self.a
        a(f"v_bfe_u32 v{dst}, v0, 1, 3")
        a(f"v_lshlrev_b32 v{dst}, {shift}, v{dst}")
        a(f"v_and_b32 v{t}, 1, v0")
        a(f"v_lshl_add_u32 v{dst}, v{t}, 5, v{dst}")
        a(f"v_and_b32 v{t}, 16, v0")
        a(f"v_add_u32 v{dst}, v{dst}, v{t}")

    def slot(self, n):
        if self.D <= n < self.pre:
            return 96 + 4 * (n - self.D)
        return self.RING + 4 * (n % self.D)

    def issue(self, n, r=None, report=False):
        a = self.a
        if r is None:
            r = self.RING + 4 * (n % self.D)
        a(f"buffer_load_dwordx4 v[{r}:{r + 3}], v1, s[{S_CUR}:{S_CUR + 3}], s{S_SOFF} offen offset:{(n % 4) * 1024} nt")
        if n % 4 == 3:
            if self.twist:
                a(f"s_add_u32 s{S_ROW}, s{S_ROW}, 0x20000")
                a(f"s_and_b32 s{S_ROW}, s{S_ROW}, 0x7e0000")
                a(f"s_add_u32 s{S_POS}, s{S_POS}, {self.twist * 4096:#x}")
                a(f"s_and_b32 s{S_POS}, s{S_POS}, 0x1f000")
                a(f"s_or_b32 s{S_SOFF}, s{S_ROW}, s{S_POS}")
            else:
                a(f"s_add_u32 s{S_SOFF}, s{S_SOFF}, 0x20000")
                a(f"s_and_b32 s{S_SOFF}, s{S_SOFF}, 0x7fffff")
            a(f"s_or_b32 s{S_SOFF}, s{S_SOFF}, s{S_HB}")
            a(f"s_add_u32 s{S_CNT}, s{S_CNT}, 1")
            if self.fc and report:
                a(f"v_mov_b32 v242, s{S_CNT}")
                a(f"ds_write_b32 v244, v242 offset:{L_PR}")
            a(f"s_cmp_eq_u32 s{S_CNT}, 64")
            a(f"s_cselect_b32 s{S_CUR}, s{S_V}, s{S_CUR}")
            a(f"s_cselect_b32 s{S_CUR + 1}, s{S_V + 1}, s{S_CUR + 1}")

    def k_consume(self, j, r=None):
        a = self.a
        if r is None:
            r = self.RING + 4 * j
        p = 12 + j % 4
        a(f"v_dot2_f32_bf16 v{p}, v{r}, v6, 0")
        for d in range(1, 4):
            a(f"v_dot2_f32_bf16 v{p}, v{r + d}, v{6 + d}, v{p}")
        if j % 4 == 3:
            t = 16 + j // 4
            a("v_add_f32_dpp v12, v12, v12 row_ror:8 row_mask:0xf bank_mask:0x3")
            a("v_add_f32_dpp v12, v14, v14 row_ror:8 row_mask:0xf bank_mask:0xc")
            a("v_add_f32_dpp v13, v13, v13 row_ror:8 row_mask:0xf bank_mask:0x3")
            a("v_add_f32_dpp v13, v15, v15 row_ror:8 row_mask:0xf bank_mask:0xc")
            a(f"v_add_f32_dpp v{t}, v12, v12 row_shl:4 row_mask:0xf bank_mask:0x5")
            a("s_nop 0")
            a(f"v_add_f32_dpp v{t}, v13, v13 row_shr:4 row_mask:0xf bank_mask:0xa")
        if j == self.D - 1:
            qp1 = "quad_perm:[1,0,3,2] row_mask:0xf bank_mask:0xf"
            qp2 = "quad_perm:[2,3,0,1] row_mask:0xf bank_mask:0xf"
            for t in range(16, 20):
                a(f"v_add_f32_dpp v{t}, v{t}, v{t} {qp1}")
            a(f"v_cndmask_b32 v16, v16, v17, s[{S_ODD}:{S_ODD + 1}]")
            a(f"v_cndmask_b32 v18, v18, v19, s[{S_ODD}:{S_ODD + 1}]")
            a("s_nop 0")
            a(f"v_add_f32_dpp v16, v16, v16 {qp2}")
            a(f"v_add_f32_dpp v18, v18, v18 {qp2}")
            a(f"v_cndmask_b32 v20, v16, v18, s[{S_BIT1}:{S_BIT1 + 1}]")
            self.rbf(20)
            a(f"v_mul_f32 v20, s{S_SCALE}, v20")
            self.rbf(20)
            a("v_max_f32 v10, v10, v20")
            a("ds_write_b16_d16_hi v11, v20")
            a("v_add_u32 v11, 128, v11")

    def v_softmax(self):
        a = self.a
        a("s_waitcnt lgkmcnt(0)")
        self.level_masks()
        a(f"v_fma_f32 v20, v245, s{S_L2E}, v23")
        a("v_exp_f32 v20, v20")
        a("s_nop 0")
        a("v_cvt_pk_bf16_f32 v241, v20, v20")

    def v_consume(self, j):
        a = self.a
        src = 4 * (j % 4) + j // 4
        for d in range(4):
            a(f"v_and_b32_dpp v{28 + d}, v241, v{2 + d} row_newbcast:{src} row_mask:0xf bank_mask:0xf")
        a("s_nop 1")
        self.mfma(24, 28, self.RING + 4 * j)

    def step_wait(self, j, waits):
        a = self.a
        if not self.fc:
            a(f"s_waitcnt vmcnt({waits[j % len(waits)] - 1})")
            return
        self.nlab += 1
        lab = f"L_go{self.nlab}"
        a(f"s_waitcnt vmcnt({self.LA - 1})")
        a(f"s_bitcmp1_b32 s{S_M5}, {j}")
        a(f"s_cbranch_scc0 {lab}")
        a(f"s_waitcnt vmcnt({self.LA - 2})")
        a(f"s_bitcmp1_b32 s{S_M4}, {j}")
        a(f"s_cbranch_scc0 {lab}")
        a(f"s_waitcnt vmcnt({self.LA - 3})")
        a(f"{lab}:")

    def level_fetch(self):
        if self.fc:
            self.a(f"ds_read_b32 v246, v247 offset:{L_FL + 12}")

    def level_masks(self):
        if self.fc:
            self.a(f"v_cmp_le_i32 s[{S_M5}:{S_M5 + 1}], v246, v248")
            self.a(f"v_cmp_le_i32 s[{S_M4}:{S_M4 + 1}], v246, v249")

    def v_loop(self, label, waits, upto):
        a = self.a
        a(f"{label}:")
        self.v_softmax()
        for j in range(self.D):
            self.step_wait(j, waits)
            self.issue(j + self.LA, report=True)
            self.v_consume(j)
            if j == 8:
                a("ds_read_u16_d16_hi v245, v22")
                a("v_add_u32 v22, 128, v22")
                self.level_fetch()
        a(f"s_add_u32 s{S_IT}, s{S_IT}, 1")
        a(f"s_cmp_lt_u32 s{S_IT}, {upto}")
        a(f"s_cbranch_scc1 {label}")

    def streamer(self):
        a, c, D, LA, pre = self.a, self.c, self.D, self.LA, self.pre
        c("---- streaming waves: K pass (scores), V pass (weighted sum) ----")
        a("v_lshlrev_b32 v1, 4, v0")
        a(f"s_lshl_b32 s{S_HB}, s{S_HEAD}, 23")
        a(f"s_lshl_b32 s{S_T0}, s{S_SPL}, 2")
        a(f"s_add_u32 s{S_T0}, s{S_T0}, s{S_WAVE}")
        a(f"s_lshl_b32 s{S_POS}, s{S_T0}, 12")
        a(f"s_mul_i32 s{S_ROW}, s{S_HEAD}, {self.rot * 1024}")
        a(f"s_and_b32 s{S_ROW}, s{S_ROW}, 0x7e0000")
        a(f"s_or_b32 s{S_SOFF}, s{S_ROW}, s{S_POS}")
        a(f"s_or_b32 s{S_SOFF}, s{S_SOFF}, s{S_HB}")
        a(f"s_mov_b32 s{S_CNT}, 0")
        a("s_waitcnt lgkmcnt(0)")
        self.srd(S_CUR, S_K, 0x10000000)
        a(f"s_and_b32 s{S_V + 1}, s{S_V + 1}, 0xffff")
        for n in range(self.early):
            self.issue(n, self.slot(n))
        a(f"s_load_dwordx2 s[{S_EP}:{S_EP + 1}], s[{S_WS}:{S_WS + 1}], {WS_EP}")
        a("s_barrier")
        for n in range(self.early, self.pre_n):
            self.issue(n, self.slot(n))
        self.srd(S_W, S_WS, WS_SIZE)
        self.masks(2, 20, 21)
        a(f"s_mov_b32 s{S_ODD}, 0xaaaaaaaa")
        a(f"s_mov_b32 s{S_ODD + 1}, 0xaaaaaaaa")
        a(f"s_mov_b32 s{S_BIT1}, 0xcccccccc")
        a(f"s_mov_b32 s{S_BIT1 + 1}, 0xcccccccc")
        a(f"s_mov_b32 s{S_SCALE}, {SCALE:#x}")
        a(f"s_mov_b32 s{S_L2E}, {LOG2E:#x}")
        a("v_mov_b32 v10, 0xff800000")
        a(f"s_lshl_b32 s{S_T0}, s{S_WAVE}, 11")
        a(f"s_add_u32 s{S_T0}, s{S_T0}, {L_SC}")
        a(f"v_lshl_add_u32 v11, v0, 1, s{S_T0}")
        a("v_mov_b32 v22, v11")
        a("v_and_b32 v23, 15, v0")
        a("v_lshlrev_b32 v23, 4, v23")
        a("v_mov_b32 v245, 0")
        for i in range(24, 28):
            a(f"v_mov_b32 v{i}, 0")
        if self.fc:
            c("v248 / v249: thresholds of the throttle masks in bit-reversed step order")
            a("v_bfrev_b32 v248, v0")
            a("v_lshrrev_b32 v248, 28, v248")
            a("v_sub_u32 v249, 15, v248")
            a("v_add_u32 v248, 16, v249")
            a("v_mov_b32 v247, 0")
            a(f"s_lshl_b32 s{S_T0}, s{S_WAVE}, 8")
            a(f"v_lshl_add_u32 v244, v0, 2, s{S_T0}")
            a(f"v_mov_b32 v242, 0")
            a(f"ds_write_b32 v244, v242 offset:{L_PR}")
        a("v_lshlrev_b32 v243, 1, v23")
        a("v_and_b32 v20, 16, v0")
        a(f"s_lshl_b32 s{S_T0}, s{S_WAVE}, 9")
        a(f"v_add3_u32 v243, v243, v20, s{S_T0}")
        for n in range(self.pre_n, pre):
            a(f"s_waitcnt vmcnt({self.pre_n - 1})")
            self.issue(n, self.slot(n))
        self.stamp(1)
        self.lds_flag_wait("q", L_FL, 1)
        a(f"ds_read_b128 v[6:9], v23 offset:{L_QB}")
        self.load_tags()
        a("s_waitcnt lgkmcnt(0)")
        self.stamp(2)
        c("first K bodies: drain the prefetched loads")
        nre = min(LA, self.waits[0])
        done = 0
        for k in range(pre):
            a(f"s_waitcnt vmcnt({pre - 1 + done - k})")
            self.k_consume(k % D, self.slot(k))
            if k < nre or (k >= pre - (LA - nre)):
                self.issue(pre + done)
                done += 1
        assert done == LA
        a(f"s_mov_b32 s{S_IT}, {pre // D}")
        self.level_fetch()
        a("L_kloop:")
        if self.fc:
            a("s_waitcnt lgkmcnt(0)")
            self.level_masks()
            a("s_nop 3")
        for j in range(D):
            self.step_wait(j, self.waits)
            self.issue(j + LA, report=True)
            self.k_consume(j)
            if j == 8:
                self.level_fetch()
        a(f"s_add_u32 s{S_IT}, s{S_IT}, 1")
        a(f"s_cmp_lt_u32 s{S_IT}, 16")
        a("s_cbranch_scc1 L_kloop")
        self.stamp(3)
        c("wave maximum of the scores")
        a("ds_read_u16_d16_hi v245, v22")
        a("v_add_u32 v22, 128, v22")
        self.allreduce("v_max_f32", 10, 20)
        a(f"v_mul_f32_e64 v23, -v10, s{S_L2E}")
        a("v_min_u32 v10, -2, v10")
        a(f"s_lshl_b32 s{S_T0}, s{S_WAVE}, 2")
        a(f"v_mov_b32 v240, s{S_T0}")
        a("s_mov_b64 exec, 1")
        a(f"ds_write_b32 v240, v10 offset:{L_MS}")
        a("s_mov_b64 exec, -1")
        a(f"s_mov_b32 s{S_IT}, 0")
        nb = max(self.boost - 1, 0)
        self.v_loop("L_vloop", self.waits, 15 - nb)
        if nb:
            self.v_loop("L_vboost", self.boost_waits, 15)
        c("last V body")
        lw = self.boost_waits if self.boost else self.waits
        self.v_softmax()
        nxt = LA
        for j in range(D):
            if self.burst:
                while nxt < min(D, j + self.burst):
                    self.issue(nxt)
                    nxt += 1
                a(f"s_waitcnt vmcnt({nxt - 1 - j})")
            elif j + LA < D:
                self.step_wait(j, lw)
                self.issue(j + LA)
            else:
                a(f"s_waitcnt vmcnt({D - 1 - j})")
            self.v_consume(j)
            if j == 0:
                self.lds_flag_wait("scale", L_FL + 4, 2)
                a(f"ds_read_b32 v10, v240 offset:{L_SCL}")
                c("v240 / s80..s83: gather offsets of the final reduction")
                a(f"s_lshl_b32 s{S_T1}, s{S_WAVE}, 10")
                a(f"v_lshl_add_u32 v240, v0, 4, s{S_T1}")
                a(f"s_lshl_b32 s{S_T1}, s{S_RED}, {15 if self.wide else 14}")
                a(f"s_add_u32 s80, s{S_T1}, {WS_YA:#x}")
                for i in range(1, 4):
                    a(f"s_add_u32 s{80 + i}, s80, {i * 4096}")
                a("v_add_u32 v239, 0x4000, v240")
                a(f"v_mov_b32 v22, {L_FL + 8}")
                a("v_mov_b32 v23, 1")
                a("s_waitcnt lgkmcnt(0)")
        self.stamp(4)
        c("hand this wave's normalised partial o to the helper wave")
        a("s_mov_b32 exec_hi, 0")
        a("s_nop 6")
        for i in range(24, 28):
            a(f"v_mul_f32 v{i}, v10, v{i}")
        a(f"ds_write_b128 v243, v[24:27] offset:{L_OP}")
        a("s_mov_b64 exec, 1")
        a("ds_add_u32 v22, v23")
        a("s_mov_b64 exec, -1")
        self.stamp(7)
        a(f"s_cmp_lt_u32 s{S_RED}, {self.nred}")
        a("s_cbranch_scc0 L_finish")
        G = 8 if self.wide else 4
        c(f"---- final reduction of {4 * G} output columns over all 256 workgroups ----")
        self.srd(S_A, S_X, 1152)
        self.srd(S_B, S_B2, 1152)
        a(f"s_mul_i32 s{S_T0}, s{S_RED}, {8 * G}")
        a(f"v_and_b32 v21, {G - 1}, v0")
        a(f"v_lshl_add_u32 v11, v21, 3, s{S_T0}")
        a(f"buffer_load_dwordx2 v[6:7], v11, {A}, 0 offen")
        a(f"buffer_load_dwordx2 v[8:9], v11, {B}, 0 offen")
        self.srd(S_A, S_OUT, 1152)
        a("L_gather:")
        for i in range(G):
            a(f"buffer_load_dwordx4 v[{40 + 4 * i}:{43 + 4 * i}], v{240 if i < 4 else 239}, {W}, s{80 + i % 4} offen sc1")
        a("s_waitcnt vmcnt(0)")
        self.tag_check([40 + 4 * i for i in range(G)], 20, 32, quad=True, octet=self.wide)
        a("s_and_b64 exec, exec, vcc")
        a("s_cbranch_execz L_gathered")
        self.retry("L_gather", self.o_sleep)
        a("L_gathered:")
        a("s_mov_b64 exec, -1")
        self.stamp(8)
        self.tag_strip(40, 40 + 4 * G)
        step = 1
        while step < G:
            for k in range(0, G, 2 * step):
                for i in range(4):
                    a(f"v_add_f32 v{40 + 4 * k + i}, v{40 + 4 * k + i}, v{40 + 4 * (k + step) + i}")
            step *= 2
        self.quad_col_reduce([40, 41, 42, 43], [44, 45, 46, 47], (8,) if self.wide else (4, 8))
        a(f"s_mul_i32 s{S_T0}, s{S_WAVE}, {16 * G}")
        a(f"v_lshl_add_u32 v20, v0, 4, s{S_T0}")
        a(f"s_mov_b64 exec, {(1 << G) - 1}")
        a(f"ds_write_b128 v20, v[40:43] offset:{L_RP}")
        a("s_waitcnt lgkmcnt(0)")
        a("s_barrier")
        a(f"s_cmp_eq_u32 s{S_WAVE}, 0")
        a("s_cbranch_scc0 L_finish")
        for w in range(4):
            a(f"ds_read_b128 v[{32 + 4 * w}:{35 + 4 * w}], v20 offset:{L_RP + w * 16 * G}")
        for src, dst in ((6, 48), (8, 52)):
            a(f"v_lshlrev_b32 v{dst}, 16, v{src}")
            a(f"v_and_b32 v{dst + 1}, 0xffff0000, v{src}")
            a(f"v_lshlrev_b32 v{dst + 2}, 16, v{src + 1}")
            a(f"v_and_b32 v{dst + 3}, 0xffff0000, v{src + 1}")
        for i in range(4):
            a(f"v_add_f32 v{48 + i}, v{48 + i}, v{52 + i}")
        for w in range(4):
            a(f"s_waitcnt lgkmcnt({3 - w})")
            for i in range(4):
                a(f"v_add_f32 v{48 + i}, v{48 + i}, v{32 + 4 * w + i}")
        if self.perturb:
            import struct
            bits = struct.unpack("<I", struct.pack("<f", self.perturb[0]))[0]
            a(f"s_cmp_lt_u32 s{S_RED}, {self.perturb[1]}")
            a(f"s_cselect_b32 s{S_T0}, {bits:#x}, 0")
            for i in range(4):
                a(f"v_add_f32 v{48 + i}, s{S_T0}, v{48 + i}")
        a("v_cvt_pk_bf16_f32 v32, v48, v49")
        a("v_cvt_pk_bf16_f32 v33, v50, v51")
        a(f"buffer_store_dwordx2 v[32:33], v11, {A}, 0 offen")
        a(f"s_cmp_eq_u32 s{S_RED}, 0")
        a("s_cbranch_scc0 L_finish")
        c("every workgroup has consumed the epoch words: advance them")
        a("s_mov_b64 exec, 1")
        a(f"v_mov_b32 v22, s{S_TAGA}")
        a(f"v_mov_b32 v23, s{S_TAGB}")
        a(f"buffer_store_dwordx2 v[22:23], v20, {W}, 0 offen offset:{WS_EP}")
        a("L_finish:")
        self.stamp(9)
        self.stamp_flush()
        a("s_endpgm")

    def group_store(self, instrs):
        a = self.a
        self.nlab += 1
        n = self.nlab
        a(f"s_cmp_eq_u32 s{S_UNI}, 1")
        a(f"s_cbranch_scc1 L_near{n}")
        for x in instrs:
            a(x + (" sc1" if x.startswith("buffer_store") else ""))
        a(f"s_branch L_sent{n}")
        a(f"L_near{n}:")
        for x in instrs:
            a(x)
        a(f"L_sent{n}:")

    def resolve_ids(self):
        a = self.a
        self.nlab += 1
        n = self.nlab
        a(f"s_cmp_eq_u32 s{S_UNI}, 2")
        a(f"s_cbranch_scc0 L_known{n}")
        a(f"v_xor_b32 v57, s{S_TAGA}, v57")
        a(f"v_xor_b32 v59, s{S_TAGB}, v59")
        a("v_or_b32 v57, v57, v59")
        a("v_cmp_ne_u32 vcc, 0, v57")
        a("s_and_b64 vcc, vcc, exec")
        a(f"s_cbranch_scc0 L_all{n}")
        a(f"buffer_load_dwordx4 v[56:59], v19, {W}, s81 offen sc1")
        a(f"s_branch L_known{n}")
        a(f"L_all{n}:")
        a(f"v_cmp_ne_u32 vcc, s{S_XCC}, v56")
        a("s_and_b64 vcc, vcc, exec")
        a(f"s_cselect_b32 s{S_UNI}, 0, {int(self.fast)}")
        a(f"s_cbranch_scc0 L_known{n}")
        a("s_mov_b32 exec_hi, 0")
        a(f"buffer_store_dwordx4 v[80:83], v18, {W}, s82 offen sc1")
        a("s_mov_b64 exec, -1")
        a(f"L_known{n}:")

    def prepoll(self, name, soff, stride, sleep):
        a = self.a
        a(f"v_mul_u32_u24 v52, {stride}, v0")
        a("s_mov_b64 exec, 0xff")
        a(f"L_{name}_pre:")
        a(f"buffer_load_dwordx4 v[20:23], v52, {W}, s{soff} offen sc1")
        a("s_waitcnt vmcnt(0)")
        self.tag_check([20], 53, 24)
        a("s_and_b64 exec, exec, vcc")
        a(f"s_cbranch_execz L_{name}_seen")
        self.retry(f"L_{name}_pre", sleep)
        a(f"L_{name}_seen:")
        a("s_mov_b64 exec, -1")

    def record_gather(self, name, soff, stride, tail=False, on_retry=None):
        a = self.a
        a("v_lshrrev_b32 v52, 5, v0")
        a(f"v_mul_u32_u24 v52, {stride}, v52")
        a("v_and_b32 v53, 31, v0")
        a("v_lshl_add_u32 v52, v53, 4, v52")
        if tail:
            a("v_lshrrev_b32 v54, 2, v53")
            a(f"v_mul_u32_u24 v54, {stride}, v54")
            a("v_and_b32 v53, 3, v0")
            a("v_lshl_add_u32 v54, v53, 4, v54")
        a(f"L_{name}_poll:")
        for k in range(4):
            a(f"buffer_load_dwordx4 v[{20 + 4 * k}:{23 + 4 * k}], v52, {W}, s{soff} offen offset:{2 * stride * k} sc1")
        if tail:
            a(f"buffer_load_dwordx4 v[36:39], v54, {W}, s{soff} offen offset:512 sc1")
        a("s_waitcnt vmcnt(0)")
        self.tag_check([20, 24, 28, 32] + ([36] if tail else []), 53, 40)
        a("s_and_b64 vcc, vcc, exec")
        a(f"s_cbranch_scc0 L_{name}_done")
        if on_retry:
            on_retry()
        self.retry(f"L_{name}_poll")
        a(f"L_{name}_done:")
        self.tag_strip(20, 40 if tail else 36)
        for i in range(4):
            a(f"v_add_f32 v{20 + i}, v{20 + i}, v{24 + i}")
        for i in range(4):
            a(f"v_add_f32 v{28 + i}, v{28 + i}, v{32 + i}")
        for i in range(4):
            a(f"v_add_f32 v{20 + i}, v{20 + i}, v{28 + i}")
        for i in range(4):
            a(f"v_mov_b32 v{24 + i}, v{20 + i}")
        for i in range(4):
            a(f"v_permlane32_swap_b32 v{20 + i}, v{24 + i}")
        for i in range(4):
            a(f"v_add_f32 v{20 + i}, v{20 + i}, v{24 + i}")
        if tail:
            for r in (4, 8):
                for i in range(4):
                    a(f"v_add_f32_dpp v{36 + i}, v{36 + i}, v{36 + i} row_ror:{r} row_mask:0xf bank_mask:0xf")
            for i in range(4):
                a(f"v_mov_b32 v{40 + i}, v{36 + i}")
            for i in range(4):
                a(f"v_permlane16_swap_b32 v{36 + i}, v{40 + i}")
            for i in range(4):
                a(f"v_add_f32 v{36 + i}, v{36 + i}, v{40 + i}")

    def row_frag_loads(self, rows, voff, dst):
        a = self.a
        for j in range(rows):
            for b in range(4):
                r = dst + 4 * (5 * j + b)
                a(f"buffer_load_dwordx4 v[{r}:{r + 3}], v{voff}, {B}, s{S_T0} offen offset:{256 * b} {self.w_flags}")
            r = dst + 4 * (5 * j + 4)
            self.set_exec(0x00FF00FF, 0x00FF00FF)
            a(f"buffer_load_dwordx4 v[{r}:{r + 3}], v{voff}, {B}, s{S_T0} offen offset:1024 {self.w_flags}")
            a("s_mov_b64 exec, -1")
            if j < rows - 1:
                a(f"s_add_u32 s{S_T0}, s{S_T0}, 1152")

    def row_frag_project(self, rows, aval, src, first):
        for j in range(rows):
            self.a_frag(84 + 4 * (j % 2), aval + j)
            self.a("s_nop 1")
            for b in range(5):
                self.mfma(200 + 4 * b, 84 + 4 * (j % 2), src + 4 * (5 * j + b), first=(first and j == 0))

    def fc_setup(self):
        if not self.fc:
            return
        a = self.a
        a(f"s_and_b32 s95, s{S_XCC}, 7")
        a("s_lshl_b32 s95, s95, 10")
        a(f"s_add_u32 s95, s95, {WS_PX:#x}")
        a("v_and_b32 v220, 3, v0")
        a("v_lshlrev_b32 v220, 8, v220")
        a("v_and_b32 v221, 7, v0")
        a("v_lshlrev_b32 v221, 4, v221")
        a(f"s_lshl_b32 s{S_T1}, s{S_SLOT}, 2")
        a(f"v_mov_b32 v224, s{S_T1}")
        a("v_mov_b32 v228, 0")
        a(f"s_and_b32 s91, s{S_TAGA}, 0xffff0000")
        a(f"v_mov_b32 v239, s{S_TAGA}")
        a(f"s_mov_b32 s{S_PREV}, -1")
        a(f"v_mov_b32 v241, {f32(self.l0 + 0.5):#x}")
        if self.par:
            a(f"s_mov_b32 s{S_T1}, {f32(self.par):#x}")
            a(f"s_bitcmp1_b32 s{S_XCC}, 0")
            a(f"s_cselect_b32 s{S_T1}, {f32(-self.par):#x}, s{S_T1}")
            a(f"v_add_f32 v241, s{S_T1}, v241")
        a("s_lshr_b32 s90, s2, 3")
        a("s_lshl_b32 s90, s90, 7")
        a(f"s_add_u32 s90, s90, {WS_LX:#x}")

    def fc_own(self):
        a = self.a
        a(f"ds_read_b32 v222, v220 offset:{L_PR}")
        a("s_waitcnt lgkmcnt(0)")
        for qp in ("[1,0,3,2]", "[2,3,0,1]"):
            a(f"v_add_u32_dpp v222, v222, v222 quad_perm:{qp} row_mask:0xf bank_mask:0xf")
            a("s_nop 1")

    def fc_publish(self):
        self.a("v_or_b32 v223, s91, v222")
        self.a("s_mov_b64 exec, 1")
        self.a(f"buffer_store_dword v223, v224, {W}, s95 offen")
        self.a("s_mov_b64 exec, -1")

    def fc_step(self):
        a = self.a
        self.fc_own()
        a(f"v_readfirstlane_b32 s{S_OWN}, v222")
        self.fc_publish()
        a(f"buffer_load_dwordx4 v[230:233], v6, {W}, s95 offen sc1")
        a(f"s_cmp_eq_u32 s{S_PREV}, -1")
        a(f"s_cselect_b32 s{S_PREV}, s{S_OWN}, s{S_PREV}")
        a("v_mov_b32 v234, 0")
        a("s_waitcnt vmcnt(0)")
        for i in range(4):
            a(f"v_xor_b32 v235, s91, v{230 + i}")
            a("v_cmp_gt_u32 vcc, 0x10000, v235")
            a("v_or_b32 v235, 0x100000, v235")
            a("s_nop 0")
            a("v_cndmask_b32 v235, 0, v235, vcc")
            a("v_add_u32 v234, v234, v235")
        self.allreduce("v_add_u32", 234, 235)
        a("v_lshrrev_b32 v235, 20, v234")
        a("v_and_b32 v234, 0xfffff, v234")
        a("v_cvt_f32_u32 v235, v235")
        a("v_cvt_f32_u32 v234, v234")
        a("v_rcp_f32 v235, v235")
        a(f"s_add_u32 s{S_PREV}, s{S_PREV}, s{S_OWN}")
        a("v_mul_f32 v238, v234, v235")
        a(f"v_cvt_f32_u32 v235, s{S_PREV}")
        a("v_fma_f32 v234, v235, -0.5, v238")
        a(f"v_mul_f32 v234, {f32(self.gain):#x}, v234")
        a("v_add_f32 v234, v234, v241")
        a("v_cvt_i32_f32 v234, v234")
        a("s_mov_b64 exec, 1")
        a(f"ds_write_b32 v228, v234 offset:{L_FL + 12}")
        a("s_mov_b64 exec, -1")
        a(f"s_mov_b32 s{S_PREV}, s{S_OWN}")

    def fc_mark(self):
        if not (self.fc and self.g2):
            return
        a = self.a
        self.fc_own()
        a("v_cvt_f32_u32 v242, v222")
        a(f"s_lshl_b32 s{S_T1}, s2, 4")
        a(f"s_add_u32 s{S_T1}, s{S_T1}, {WS_LX:#x}")
        a("s_mov_b64 exec, 1")
        a(f"buffer_store_dword v239, v228, {W}, s{S_T1} offen sc1")
        a("s_mov_b64 exec, -1")
        a(f"s_mov_b32 s{S_LEAD}, 1")

    def fc_lead(self):
        if not (self.fc and self.g2):
            return
        a = self.a
        self.nlab += 1
        lab = f"L_lead{self.nlab}"
        a(f"s_cmp_eq_u32 s{S_LEAD}, 1")
        a(f"s_cbranch_scc0 {lab}")
        a(f"buffer_load_dword v226, v221, {W}, s90 offen sc1")
        a("s_waitcnt vmcnt(0)")
        a(f"v_cmp_ne_u32 vcc, s{S_TAGA}, v226")
        a("s_and_b64 vcc, vcc, exec")
        a(f"s_cbranch_scc1 {lab}")
        self.fc_own()
        a("v_cvt_f32_u32 v222, v222")
        a("v_sub_f32 v242, v242, v222")
        a(f"v_add_f32 v242, {f32(self.typ):#x}, v242")
        a(f"v_fmac_f32 v241, {f32(self.g2):#x}, v242")
        a(f"s_mov_b32 s{S_LEAD}, 0")
        a(f"{lab}:")

    def gelu(self, v, t0, t1):
        a = self.a
        a(f"v_mul_f32 v{t0}, v{v}, v{v}")
        a(f"v_mul_f32 v{t0}, v{t0}, v{v}")
        a(f"v_mov_b32 v{t1}, v{v}")
        a(f"v_fmac_f32 v{t1}, 0x3d372713, v{t0}")
        a(f"v_mul_f32 v{t1}, 0xc0135761, v{t1}")
        a(f"v_exp_f32 v{t1}, v{t1}")
        a("s_nop 0")
        a(f"v_add_f32 v{t1}, 1.0, v{t1}")
        a(f"v_rcp_f32 v{t1}, v{t1}")
        a("s_nop 0")
        a(f"v_mul_f32 v{v}, v{v}, v{t1}")
        a(f"v_cvt_pk_bf16_f32 v{v}, v{v}, v{v}")

    def helper(self):
        a, c = self.a, self.c
        a("L_helper:")
        c("---- helper wave: layernorm, q / FFN projections and their exchanges, output projection ----")
        a("v_lshlrev_b32 v1, 2, v0")
        a("v_lshrrev_b32 v8, 4, v0")
        a("v_and_b32 v9, 15, v0")
        a("v_lshlrev_b32 v9, 4, v9")
        a("v_mul_u32_u24 v7, 147456, v8")
        a("v_add_u32 v7, v7, v9")
        a("v_mul_u32_u24 v16, 165888, v8")
        a("v_add_u32 v16, v16, v9")
        a(f"s_mul_i32 s{S_T0}, s{S_SPL}, 589824")
        a(f"s_lshl_b32 s{S_T1}, s{S_HEAD}, 8")
        a(f"s_add_u32 s{S_T0}, s{S_T0}, s{S_T1}")
        a(f"s_mul_i32 s79, s{S_SPL}, 663552")
        a(f"s_mul_i32 s{S_T1}, s{S_HEAD}, 288")
        a(f"s_add_u32 s79, s79, s{S_T1}")
        for i in range(4):
            a(f"v_mov_b32 v{20 + i}, -1")
            a(f"v_mov_b32 v{24 + i}, 0")
        a(f"v_mov_b32 v27, {self.l0}")
        a("s_mov_b64 exec, 1")
        a(f"ds_write_b128 v1, v[20:23] offset:{L_MS}")
        a(f"ds_write_b128 v1, v[24:27] offset:{L_FL}")
        a(f"ds_write_b64 v1, v[24:25] offset:{L_HR + 72}")
        a("s_mov_b64 exec, -1")
        a("s_waitcnt lgkmcnt(0)")
        self.srd(S_A, S_X, 1152)
        for i in range(5):
            a(f"buffer_load_dword v{10 + i}, v1, {A}, 0 offen offset:{256 * i}")
        self.srd(S_B, S_WQ, 4718592)
        for j in range(18):
            a(f"buffer_load_dwordx4 v[{96 + 4 * j}:{99 + 4 * j}], v7, {B}, s{S_T0} offen {self.w_flags}")
            if j < 17:
                a(f"s_add_u32 s{S_T0}, s{S_T0}, 8192")
        a("s_barrier")
        a(f"s_load_dwordx2 s[{S_EP}:{S_EP + 1}], s[{S_WS}:{S_WS + 1}], {WS_EP}")
        self.srd(S_W, S_WS, WS_SIZE)
        self.masks(2, 20, 21)
        a(f"s_mov_b32 s{S_L2E}, {LOG2E:#x}")
        a(f"s_mov_b32 s{S_ODD}, -1")
        a(f"s_mov_b32 s{S_ODD + 1}, 0")
        a("v_lshlrev_b32 v6, 4, v0")
        a("v_lshlrev_b32 v54, 3, v0")
        a(f"s_mul_i32 s{S_T1}, s{S_SPL}, 288")
        a("v_mul_u32_u24 v55, 72, v8")
        a(f"v_add_u32 v55, s{S_T1}, v55")
        c("announce this workgroup's XCD to its head group")
        a(f"s_getreg_b32 s{S_XCC}, hwreg(HW_REG_XCC_ID, 0, 4)")
        a("v_and_b32 v19, 7, v0")
        a("v_lshlrev_b32 v19, 4, v19")
        a(f"s_lshl_b32 s{S_T0}, s{S_SLOT}, 4")
        a(f"s_add_u32 s{S_T0}, s{S_T0}, {WS_IX:#x}")
        a(f"s_lshl_b32 s81, s{S_HEAD}, 7")
        a(f"s_add_u32 s81, s81, {WS_IX:#x}")
        a(f"v_mov_b32 v92, s{S_XCC}")
        a(f"v_mov_b32 v94, s{S_XCC}")
        a("s_waitcnt lgkmcnt(0)")
        self.load_tags()
        a(f"v_mov_b32 v93, s{S_TAGA}")
        a(f"v_mov_b32 v95, s{S_TAGB}")
        a("s_mov_b64 exec, 1")
        a(f"buffer_store_dwordx4 v[92:95], v6, {W}, s{S_T0} offen sc1")
        a("s_mov_b64 exec, -1")
        if self.warm:
            c("pull this workgroup's q and pre-activation record lines into L2 ahead of the exchange")
            a(f"s_lshl_b32 s{S_T0}, s{S_SLOT}, 9")
            a(f"s_add_u32 s{S_T0}, s{S_T0}, {WS_QX:#x}")
            a(f"s_mul_i32 s{S_T1}, s{S_SLOT}, 576")
            a(f"s_add_u32 s{S_T1}, s{S_T1}, {WS_HX:#x}")
            a("v_lshlrev_b32 v50, 6, v0")
            a("s_mov_b64 exec, 0xff")
            a(f"buffer_load_dword v51, v50, {W}, s{S_T0} offen sc1")
            a("s_mov_b64 exec, 0x1ff")
            a(f"buffer_load_dword v51, v50, {W}, s{S_T1} offen sc1")
            a("s_mov_b64 exec, -1")
        c("v18: byte offset of this lane's accumulator granule inside a record")
        a("v_and_b32 v18, 16, v0")
        a("v_lshl_add_u32 v18, v9, 1, v18")
        nw = 2 if self.warm else 0
        a(f"s_waitcnt vmcnt({19 + nw})")
        self.stamp(1)
        c("layernorm with the reference's bf16 rounding points")
        for i in range(5):
            a(f"v_lshlrev_b32 v{20 + 2 * i}, 16, v{10 + i}")
            a(f"v_and_b32 v{21 + 2 * i}, 0xffff0000, v{10 + i}")
        a("v_add_f32 v30, v20, v21")
        for i in range(22, 30):
            a(f"v_add_f32 v30, v30, v{i}")
        self.allreduce("v_add_f32", 30, 31)
        a("v_mul_f32 v32, 0x3ae38e39, v30")
        for i in range(10):
            a(f"v_sub_f32 v{40 + i}, v{20 + i}, v32")
        a(f"v_cndmask_b32 v48, 0, v48, s[{S_ODD}:{S_ODD + 1}]")
        a(f"v_cndmask_b32 v49, 0, v49, s[{S_ODD}:{S_ODD + 1}]")
        a("v_mul_f32 v30, v40, v40")
        for i in range(41, 50):
            a(f"v_fmac_f32 v30, v{i}, v{i}")
        self.allreduce("v_add_f32", 30, 31)
        a("v_mul_f32 v33, 0x3ae38e39, v30")
        self.rbf(32)
        self.rbf(33)
        a("v_add_f32 v33, 0x3727c5ac, v33")
        self.rbf(33)
        a("v_sqrt_f32 v33, v33")
        for i in range(10):
            a(f"v_sub_f32 v{40 + i}, v{20 + i}, v32")
        self.rbf(33)
        a("v_rcp_f32 v34, v33")
        for i in range(10):
            self.rbf(40 + i)
        for i in range(10):
            a(f"v_mul_f32 v{20 + i}, v{40 + i}, v34")
        for i in range(10):
            a(f"v_fma_f32 v{40 + i}, -v{20 + i}, v33, v{40 + i}")
        for i in range(10):
            a(f"v_fmac_f32 v{20 + i}, v{40 + i}, v34")
        for i in range(10):
            a(f"v_cvt_pk_bf16_f32 v{20 + i}, v{20 + i}, v{20 + i}")
        for i in range(4):
            a(f"ds_write_b64 v54, v[{20 + 2 * i}:{21 + 2 * i}] offset:{L_XR + 512 * i}")
        a("s_mov_b32 exec_hi, 0")
        a(f"ds_write_b64 v54, v[28:29] offset:{L_XR + 2048}")
        a("s_mov_b64 exec, -1")
        for t in range(9):
            a(f"ds_read_b64 v[{60 + 2 * t}:{61 + 2 * t}], v55 offset:{L_XR + 8 * t}")
        a(f"buffer_load_dwordx4 v[56:59], v19, {W}, s81 offen sc1")
        self.stamp(2)
        a("s_waitcnt lgkmcnt(0)")
        c("partial q over rows 72*split .. 72*split+71")
        for j in range(18):
            self.a_frag(84, 60 + j)
            a(f"s_waitcnt vmcnt({19 + nw - j})")
            a("s_nop 0")
            self.mfma(80, 84, 96 + 4 * j, first=(j == 0))
        a(f"s_lshl_b32 s{S_T0}, s{S_SLOT}, 9")
        a(f"s_add_u32 s{S_T0}, s{S_T0}, {WS_QX:#x}")
        a(f"s_lshl_b32 s80, s{S_HEAD}, 12")
        a(f"s_add_u32 s80, s80, {WS_QX:#x}")
        a("s_mov_b32 exec_hi, 0")
        a("s_nop 2")
        self.tag_insert(80)
        a(f"buffer_store_dwordx4 v[80:83], v18, {W}, s{S_T0} offen{'' if self.fast else ' sc1'}")
        a("s_mov_b64 exec, -1")
        a(f"s_mov_b32 s82, s{S_T0}")
        a(f"s_mov_b32 s{S_UNI}, 2")
        self.stamp(3)
        self.record_gather("q", 80, 512, on_retry=self.resolve_ids)
        a("v_cvt_pk_bf16_f32 v24, v20, v21")
        a("v_cvt_pk_bf16_f32 v25, v22, v23")
        a("s_mov_b32 exec_hi, 0")
        a(f"ds_write_b64 v54, v[24:25] offset:{L_QB}")
        a("s_mov_b64 exec, -1")
        self.lds_flag_set(L_FL)
        self.stamp(4)
        a("L_ids:")
        self.resolve_ids()
        a(f"s_cmp_eq_u32 s{S_UNI}, 2")
        a("s_cbranch_scc0 L_ids_ok")
        a("s_waitcnt vmcnt(0)")
        self.retry("L_ids", 2)
        a("L_ids_ok:")
        if self.wide:
            a("v_bfe_u32 v17, v0, 2, 2")
            a("v_lshlrev_b32 v17, 15, v17")
            a("v_and_b32 v19, 3, v0")
            a("v_lshl_add_u32 v17, v19, 5, v17")
            a("v_and_b32 v19, 16, v0")
            a("v_add_u32 v17, v17, v19")
        else:
            self.frag_store_offset(17, 14, 19)
        if "ffn" in self.skip:
            for i in range(200, 220):
                a(f"v_mov_b32 v{i}, 0")
            a("s_branch L_ffn_skip")
        c("partial FFN pre-activations of the head group's 144 hidden columns over the same rows")
        self.srd(S_B, S_W1, 5308416)
        for j in range(18):
            a(f"buffer_load_dwordx4 v[{96 + 4 * j}:{99 + 4 * j}], v16, {B}, s79 offen {self.w_flags}")
            self.set_exec(0x00030003, 0x00030003)
            a(f"buffer_load_dwordx4 v[{168 + 4 * j}:{171 + 4 * j}], v16, {B}, s79 offen offset:256 {self.w_flags}")
            a("s_mov_b64 exec, -1")
            if j < 17:
                a("s_add_u32 s79, s79, 9216")
        for j in range(18):
            self.a_frag(84, 60 + j)
            a(f"s_waitcnt vmcnt({34 - 2 * j})")
            a("s_nop 0")
            self.mfma(80, 84, 96 + 4 * j, first=(j == 0))
            self.mfma(88, 84, 168 + 4 * j, first=(j == 0))
        a(f"s_mul_i32 s{S_T0}, s{S_SLOT}, 576")
        a(f"s_add_u32 s{S_T0}, s{S_T0}, {WS_HX:#x}")
        a(f"s_mul_i32 s80, s{S_HEAD}, 4608")
        a(f"s_add_u32 s80, s80, {WS_HX:#x}")
        a("s_mov_b32 exec_hi, 0")
        a("s_nop 2")
        self.tag_insert(80)
        self.tag_insert(88)
        self.group_store([f"buffer_store_dwordx4 v[80:83], v18, {W}, s{S_T0} offen",
                          "s_mov_b32 exec_lo, 0x00030003",
                          f"buffer_store_dwordx4 v[88:91], v18, {W}, s{S_T0} offen offset:512"])
        a("s_mov_b64 exec, -1")
        c("w2 rows of this workgroup's 18 hidden columns")
        self.srd(S_B, S_W2, 5308416)
        a("v_mul_u32_u24 v7, 5760, v8")
        a("v_add_u32 v7, v7, v9")
        a(f"s_mul_i32 s{S_T0}, s{S_SLOT}, 20736")
        self.row_frag_loads(5, 7, 96)
        self.srd(S_A, S_B1, 9216)
        a(f"s_mul_i32 s79, s{S_SLOT}, 36")
        a("v_lshlrev_b32 v19, 1, v0")
        a("v_mov_b32 v56, 0")
        a("s_mov_b64 exec, 0x3ffff")
        a(f"buffer_load_short_d16_hi v56, v19, {A}, s79 offen")
        a("s_mov_b64 exec, -1")
        self.prepoll("h", 80, 576, 8)
        self.record_gather("h", 80, 576, tail=True)
        a("s_mov_b32 exec_hi, 0")
        a(f"ds_write_b128 v6, v[20:23] offset:{L_HS}")
        a("s_mov_b32 exec_lo, 15")
        a(f"ds_write_b128 v6, v[36:39] offset:{L_HS + 512}")
        a("s_mov_b64 exec, 0x3ffff")
        a(f"s_mul_i32 s79, s{S_SPL}, 72")
        a("v_add_u32 v19, s79, v1")
        a(f"ds_read_b32 v20, v19 offset:{L_HS}")
        a("s_waitcnt lgkmcnt(0)")
        self.rbf(20)
        a("v_add_f32 v20, v20, v56")
        self.rbf(20)
        self.gelu(20, 22, 23)
        a(f"ds_write_b32 v1, v20 offset:{L_HR}")
        a("s_mov_b64 exec, -1")
        a("v_mul_u32_u24 v19, 20, v8")
        for j in range(5):
            a(f"ds_read_b32 v{60 + j}, v19 offset:{L_HR + 4 * j}")
        a("s_waitcnt lgkmcnt(0)")
        self.row_frag_project(5, 60, 96, True)
        a("L_ffn_skip:")
        self.stamp(5)
        c("wo rows of this workgroup's 16 attention columns")
        self.srd(S_B, S_WO, 0 if "wo" in self.skip else 4718592)
        a("v_mul_u32_u24 v7, 4608, v8")
        a("v_add_u32 v7, v7, v9")
        a(f"s_mul_i32 s{S_T0}, s{S_SLOT}, 18432")
        self.row_frag_loads(4, 7, 96)
        self.stamp(6)
        c("softmax denominator: wait for the four wave maxima, then sum exp over the workgroup's scores")
        a("v_mov_b32 v24, 0")
        self.fc_setup()
        a("L_max_wait:")
        a(f"ds_read_b128 v[28:31], v24 offset:{L_MS}")
        a("s_waitcnt lgkmcnt(0)")
        a("v_max3_u32 v20, v28, v29, v30")
        a("v_max_u32 v20, v20, v31")
        a("v_cmp_eq_u32 vcc, -1, v20")
        a("s_and_b64 vcc, vcc, exec")
        a("s_cbranch_scc0 L_max_ok")
        if self.fc:
            self.fc_step()
        self.retry("L_max_wait", self.fc_sleep if self.fc else 32)
        a("L_max_ok:")
        self.fc_mark()
        a("v_max3_f32 v32, v28, v29, v30")
        a("v_max_f32 v32, v32, v31")
        a(f"v_mul_f32_e64 v33, -v32, s{S_L2E}")
        a("v_mov_b32 v34, 0")
        a("v_mov_b32 v25, v6")
        a(f"s_mov_b32 s{S_IT}, 0")
        a("L_den:")
        a(f"ds_read_b128 v[36:39], v25 offset:{L_SC}")
        a("v_add_u32 v25, 1024, v25")
        a("s_waitcnt lgkmcnt(0)")
        for i in range(4):
            a(f"v_lshlrev_b32 v{40 + 2 * i}, 16, v{36 + i}")
            a(f"v_and_b32 v{41 + 2 * i}, 0xffff0000, v{36 + i}")
        for i in range(40, 48):
            a(f"v_fma_f32 v{i}, v{i}, s{S_L2E}, v33")
        for i in range(40, 48):
            a(f"v_exp_f32 v{i}, v{i}")
        a("s_nop 0")
        for i in range(40, 48):
            a(f"v_add_f32 v34, v34, v{i}")
        a(f"s_add_u32 s{S_IT}, s{S_IT}, 1")
        a(f"s_cmp_lt_u32 s{S_IT}, 8")
        a("s_cbranch_scc1 L_den")
        self.allreduce("v_add_f32", 34, 20)
        c("exchange {max, sum} inside the head and derive each wave's normalisation")
        a(f"v_mov_b32 v33, s{S_TAGA}")
        a(f"v_mov_b32 v35, s{S_TAGB}")
        a(f"s_lshl_b32 s{S_T0}, s{S_SLOT}, 4")
        a(f"s_add_u32 s{S_T0}, s{S_T0}, {WS_SX:#x}")
        a("s_mov_b64 exec, 1")
        self.group_store([f"buffer_store_dwordx4 v[32:35], v6, {W}, s{S_T0} offen"])
        a("s_mov_b64 exec, -1")
        a("v_and_b32 v25, 7, v0")
        a("v_lshlrev_b32 v25, 4, v25")
        a(f"s_lshl_b32 s{S_T0}, s{S_HEAD}, 7")
        a(f"s_add_u32 s{S_T0}, s{S_T0}, {WS_SX:#x}")
        a("L_swait:")
        a(f"buffer_load_dwordx4 v[40:43], v25, {W}, s{S_T0} offen sc1")
        a("s_waitcnt vmcnt(0)")
        a(f"v_xor_b32 v20, s{S_TAGA}, v41")
        a(f"v_xor_b32 v21, s{S_TAGB}, v43")
        a("v_or_b32 v20, v20, v21")
        a("v_cmp_ne_u32 vcc, 0, v20")
        a("s_and_b64 vcc, vcc, exec")
        a("s_cbranch_scc0 L_sdone")
        if self.fc:
            self.fc_lead()
            self.fc_step()
        self.retry("L_swait", 8 if self.fc else 32)
        a("L_sdone:")
        a("v_and_b32 v25, 3, v0")
        a("v_lshlrev_b32 v25, 2, v25")
        a(f"ds_read_b32 v45, v25 offset:{L_MS}")
        a("v_mov_b32 v44, v40")
        for r in (4, 2, 1):
            a("s_nop 1")
            a(f"v_max_f32_dpp v44, v44, v44 row_ror:{r} row_mask:0xf bank_mask:0xf")
        a("v_sub_f32 v40, v40, v44")
        a(f"v_mul_f32 v40, s{S_L2E}, v40")
        a("v_exp_f32 v40, v40")
        a("s_nop 0")
        a("v_mul_f32 v42, v42, v40")
        for r in (4, 2, 1):
            a("s_nop 1")
            a(f"v_add_f32_dpp v42, v42, v42 row_ror:{r} row_mask:0xf bank_mask:0xf")
        a("v_rcp_f32 v42, v42")
        a("s_waitcnt lgkmcnt(0)")
        a("v_sub_f32 v45, v45, v44")
        a(f"v_mul_f32 v45, s{S_L2E}, v45")
        a("v_exp_f32 v45, v45")
        a("s_nop 0")
        a("v_mul_f32 v45, v45, v42")
        a("s_mov_b64 exec, 15")
        a(f"ds_write_b32 v25, v45 offset:{L_SCL}")
        a("s_mov_b64 exec, -1")
        self.lds_flag_set(L_FL + 4)
        self.stamp(7)
        c("sum the four waves' partial o and send each 16-column slice to its owner in the head group")
        a("v_bfe_u32 v26, v0, 2, 3")
        a("v_lshlrev_b32 v26, 9, v26")
        a("v_and_b32 v27, 3, v0")
        a("v_lshl_add_u32 v26, v27, 4, v26")
        a(f"s_lshl_b32 s80, s{S_HEAD}, 12")
        a(f"s_lshl_b32 s{S_T1}, s{S_SPL}, 6")
        a(f"s_add_u32 s80, s80, s{S_T1}")
        a(f"s_add_u32 s80, s80, {WS_OX:#x}")
        a("v_and_b32 v25, 7, v0")
        a("v_lshlrev_b32 v25, 6, v25")
        a("v_lshl_add_u32 v25, v8, 4, v25")
        a(f"s_lshl_b32 s79, s{S_SLOT}, 9")
        a(f"s_add_u32 s79, s79, {WS_OX:#x}")
        a(f"s_lshl_b32 s81, s{S_SLOT}, {7 if self.wide else 6}")
        a(f"s_add_u32 s81, s81, {WS_YA:#x}")
        if self.fc:
            a("L_fc:")
            self.fc_lead()
            self.fc_step()
            a(f"s_cmp_ge_u32 s{S_OWN}, {self.fc_stop}")
            a("s_cbranch_scc1 L_fc_end")
            self.retry("L_fc", self.fc_sleep)
            a("L_fc_end:")
            a("v_mov_b32 v222, 512")
            a(f"v_mov_b32 v226, {self.l_end}")
            self.fc_publish()
            a("s_mov_b64 exec, 1")
            a(f"ds_write_b32 v228, v226 offset:{L_FL + 12}")
            a("s_mov_b64 exec, -1")
        if self.warm:
            a(f"buffer_load_dwordx4 v[84:87], v25, {W}, s79 offen sc1")
        self.lds_flag_wait("last", L_FL + 8, 1, 4)
        self.stamp(10)
        a("s_mov_b32 exec_hi, 0")
        for w in range(4):
            a(f"ds_read_b128 v[{60 + 4 * w}:{63 + 4 * w}], v6 offset:{L_OP + 512 * w}")
        for w in range(1, 4):
            a(f"s_waitcnt lgkmcnt({3 - w})")
            for i in range(4):
                a(f"v_add_f32 v{60 + i}, v{60 + i}, v{60 + 4 * w + i}")
        self.tag_insert(60)
        self.group_store([f"buffer_store_dwordx4 v[60:63], v26, {W}, s80 offen"])
        a("s_mov_b64 exec, -1")
        self.stamp(11)
        a("L_owait:")
        a(f"buffer_load_dwordx4 v[64:67], v25, {W}, s79 offen sc1")
        a("s_waitcnt vmcnt(0)")
        self.tag_check([64], 20, 68)
        c("a source row is spread over lanes 16 apart: keep polling all four while one is missing")
        a("s_or_b32 vcc_lo, vcc_lo, vcc_hi")
        a(f"s_lshr_b32 s{S_T0}, vcc_lo, 16")
        a(f"s_or_b32 s{S_T0}, s{S_T0}, vcc_lo")
        a(f"s_and_b32 s{S_T0}, s{S_T0}, 0xffff")
        a("s_cbranch_scc0 L_odone")
        a(f"s_mul_i32 exec_lo, s{S_T0}, 0x10001")
        a("s_mov_b32 exec_hi, exec_lo")
        self.retry("L_owait", self.o_sleep)
        a("L_odone:")
        a("s_mov_b64 exec, -1")
        self.stamp(8)
        self.tag_strip(64, 68)
        for r in (4, 2, 1):
            for i in range(4):
                a(f"v_add_f32_dpp v{64 + i}, v{64 + i}, v{64 + i} row_ror:{r} row_mask:0xf bank_mask:0xf")
        for i in range(4):
            a(f"v_cvt_pk_bf16_f32 v{64 + i}, v{64 + i}, v{64 + i}")
        c("project through wo on top of the FFN partial and publish")
        for j in range(4):
            self.a_frag(68 + 4 * j, 64 + j)
        a("s_nop 1")

        def send(b):
            a("s_mov_b32 exec_hi, 0")
            self.tag_insert(200 + 4 * b)
            if b == 4:
                a("s_mov_b32 exec_lo, 0x00ff00ff")
            a(f"buffer_store_dwordx4 v[{200 + 4 * b}:{203 + 4 * b}], v17, {W}, s81 offen sc1")
            if b < 4:
                a("s_add_u32 s81, s81, 0x20000")
                a("s_mov_b32 exec_hi, -1")

        for b in range(5):
            for j in range(4):
                self.mfma(200 + 4 * b, 68 + 4 * j, 96 + 4 * (5 * j + b))
            if b >= 2:
                send(b - 2)
        send(3)
        a("s_nop 0")
        send(4)
        if self.stamps is True:
            self.stamp(12)
            a("s_waitcnt vmcnt(0)")
        self.stamp(9)
        self.stamp_flush()
        a("s_endpgm")

    def build(self, header):
        a = self.a
        a("s_cmp_ge_u32 s2, 256")
        a("s_cbranch_scc1 L_exit")
        a("s_load_dwordx16 s[4:19], s[0:1], 0")
        a("s_load_dwordx8 s[20:27], s[0:1], 64")
        a("s_load_dwordx2 s[28:29], s[0:1], 96")
        a("v_lshrrev_b32 v1, 6, v0")
        a("v_and_b32 v0, 63, v0")
        a(f"v_readfirstlane_b32 s{S_WAVE}, v1")
        if self.xlocal:
            a(f"s_and_b32 s{S_T0}, s2, 7")
            a(f"s_lshl_b32 s{S_T0}, s{S_T0}, 5")
            a(f"s_lshr_b32 s{S_T1}, s2, 3")
            a(f"s_add_u32 s{S_SLOT}, s{S_T0}, s{S_T1}")
        else:
            a(f"s_mov_b32 s{S_SLOT}, s2")
        self.c("slot = 8 * head + split")
        a(f"s_and_b32 s{S_SPL}, s{S_SLOT}, 7")
        a(f"s_lshr_b32 s{S_HEAD}, s{S_SLOT}, 3")
        a(f"s_sub_u32 s{S_RED}, s2, 128")
        a(f"s_mov_b32 s{S_SPIN}, 0")
        if self.stamps:
            a("v_mov_b32 v250, 0")
            self.stamp(0)
        a(f"s_cmp_eq_u32 s{S_WAVE}, 4")
        a("s_cbranch_scc1 L_helper")
        self.streamer()
        self.helper()
        a("L_exit:")
        body = "\n".join(x if x.endswith(":") else "    " + x for x in self.L)
        k = NAME + "_kernel"
        return f"""{header}
; @launch grid=(256,1,1) block=(320,1,1) lds={self.lds}
.amdgcn_target "amdgcn-amd-amdhsa--gfx950"
.text
.globl {k}
.p2align 8
.type {k},@function
{k}:
{body}
    s_endpgm
.section .rodata,"a"
.p2align 6
.amdhsa_kernel {k}
  .amdhsa_next_free_vgpr 256
  .amdhsa_next_free_sgpr 96
  .amdhsa_accum_offset 256
  .amdhsa_group_segment_fixed_size 0
  .amdhsa_kernarg_size 104
  .amdhsa_user_sgpr_count 2
  .amdhsa_user_sgpr_kernarg_segment_ptr 1
  .amdhsa_system_sgpr_workgroup_id_x 1
  .amdhsa_float_denorm_mode_32 3
.end_amdhsa_kernel
"""


def generate(**kw):
    ref = open(f"cdna_kernels/{NAME}.s.ref").read().splitlines()
    head = []
    for line in ref:
        if line.startswith("; Override launch"):
            break
        head.append(line)
    return Gen(**kw).build("\n".join(head))


if __name__ == "__main__":
    kw = eval("dict(" + (sys.argv[2] if len(sys.argv) > 2 else "") + ")")
    out = sys.argv[1] if len(sys.argv) > 1 else f"cdna_kernels/{NAME}.s"
    open(out, "w").write(generate(**kw))
```

```python
import struct
import sys

NAME = "parallel_sum__mha_block_cached__dense_activation_gelu__decode"

WS_EP = 0
WS_SX = 0x1000
WS_IX = 0x2000
WS_GX = 0x3000
WS_PX = 0x4000
WS_QX = 0x10000
WS_HX = 0x30000
WS_YA = 0x60000
WS_OX = 0x100000
WS_DBG = 0x200000
WS_SIZE = 0x280000

L_SC = 0
L_XR = 8192
L_QB = 10496
L_MS = 10752
L_FL = 10768
L_SCL = 10784
L_HR = 10816
L_RP = 15360
L_HS = 11264
L_FN = 12288
L_WF = 16384
L_YF = 36864
L_PR = 14336

TAG_A = 0x9E3779B9
TAG_B = 0x7F4A7C15
LOG2E = 0x3FB8AA3B
SCALE = 0x3DB504F3

S_X, S_K, S_V, S_WQ, S_WO, S_W1, S_B1, S_W2, S_B2, S_OUT, S_DBG, S_WS = 4, 6, 8, 10, 12, 16, 18, 20, 22, 24, 26, 28
S_EP = 30
S_CUR = 32
S_SOFF, S_CNT, S_HB, S_IT = 36, 37, 38, 39
S_A = 40
S_B = 44
S_W = 48
S_WAVE, S_HEAD, S_SPL, S_SLOT = 52, 53, 54, 55
S_T0, S_T1 = 58, 59
S_ODD, S_BIT1 = 60, 62
S_SCALE, S_L2E = 64, 65
S_TAGA, S_TAGB = 66, 67
S_RED = 68
S_T2, S_T3 = 70, 71
S_ROW, S_POS = 73, 74
S_TS = 76
S_SPIN = 78
SPIN_CAP = 1 << 21
S_M5, S_M4 = 88, 90
S_OWN, S_PREV, S_LINE = 92, 93, 94
S_XCC, S_UNI, S_LEAD = 56, 57, 69
S_RET = 96
S_MARK, S_PUB, S_MEAN, S_NAP = 98, 99, 100, 101
S_NIB = 84

W = f"s[{S_W}:{S_W + 3}]"
A = f"s[{S_A}:{S_A + 3}]"
B = f"s[{S_B}:{S_B + 3}]"


def f32(x):
    return struct.unpack("<I", struct.pack("<f", x))[0]


class Gen:
    RING = 32
    D = 32
    LA = 31

    def __init__(self, nmax=6, waits="5", rot=256, w_flags="nt", stamps=False, pre_waits=7, pre_burst=0, twist=0, xlocal=True, o_sleep=0, skip="", perturb=None, dbg_wg=128, lds=86016,
                 fc=True, l0=20, gain=1.0, l_end=32, fc_stop=496, fc_sleep=16, g2=0.8, typ=9, mark0=112, mark_step=80, mark_end=448, mark_lead=32, par=0.7, fast=True, early=4, warm="first", pad=False, wide=False, tlb=False, nt_warm="", nt_poll="nt", nt_fin="", nt_small="", w_depth=0, nt_o="", nt_s="nt", kv="nt", vfirst=False):
        self.nmax, self.rot, self.w_flags, self.stamps, self.skip = nmax, rot, w_flags, stamps, skip
        self.waits = [int(c, 16) for c in waits]
        self.pre_n, self.twist, self.xlocal, self.o_sleep = pre_waits, twist, xlocal, o_sleep
        self.perturb, self.dbg_wg, self.lds = perturb, dbg_wg, lds
        self.fc, self.l0, self.gain, self.l_end, self.fc_stop, self.fc_sleep = fc, l0, gain, l_end, fc_stop, fc_sleep
        self.g2, self.typ, self.par, self.fast, self.early = g2, typ, par, fast, early
        self.warm, self.wide, self.tlb = warm, wide, tlb
        self.nt_warm, self.nt_poll, self.nt_fin, self.nt_small = nt_warm, nt_poll, nt_fin, nt_small
        self.nred = 18 if wide else 36
        self.mark0, self.mark_step, self.mark_end, self.mark_lead = mark0, mark_step, mark_end, mark_lead
        self.kv = kv
        self.pad = int(pad)
        self.w_depth, self.nt_o, self.nt_s = w_depth, nt_o, nt_s
        self.pre_burst = max(pre_burst, pre_waits)
        self.nlab = 0
        self.L = []

    def a(self, s):
        self.L.append(s)

    def c(self, s):
        self.L.append("; " + s)

    def srd(self, r, p, size):
        self.a(f"s_mov_b32 s{r}, s{p}")
        self.a(f"s_and_b32 s{r + 1}, s{p + 1}, 0xffff")
        self.a(f"s_mov_b32 s{r + 2}, {size:#x}")
        self.a(f"s_mov_b32 s{r + 3}, 0x20000")

    def set_exec(self, lo, hi):
        self.a(f"s_mov_b32 exec_lo, {lo:#x}")
        self.a(f"s_mov_b32 exec_hi, {hi:#x}")

    def stamp(self, idx):
        if not self.stamps or (self.stamps in ("lite", "prof", "prof2") and idx not in (0, 1, 4, 9)):
            return
        self.a(f"s_memrealtime s[{S_TS}:{S_TS + 1}]")
        self.a("s_waitcnt lgkmcnt(0)")
        self.a(f"v_writelane_b32 v250, s{S_TS}, {idx}")

    def stamp_body(self, first):
        if self.stamps != "prof":
            return
        self.a(f"s_memrealtime s[{S_TS}:{S_TS + 1}]")
        self.a(f"s_add_u32 s{S_T0}, s{S_IT}, {first}")
        self.a(f"s_mov_b32 m0, s{S_T0}")
        self.a("s_waitcnt lgkmcnt(0)")
        self.a(f"v_writelane_b32 v250, s{S_TS}, m0")

    def stamp_flush(self):
        if not self.stamps:
            return
        a = self.a
        a("s_mov_b64 exec, -1")
        if self.stamps == "dbg":
            lab = f"L_dbg_{len(self.L)}"
            a(f"s_cmp_eq_u32 s2, {self.dbg_wg}")
            a(f"s_cbranch_scc0 {lab}")
            a(f"s_and_b32 s{S_TS}, s{S_WAVE}, 3")
            a(f"s_cbranch_scc1 {lab}")
            self.srd(S_A, S_DBG, 256)
            a(f"v_readlane_b32 s{S_TS}, v250, 0")
            a("s_nop 1")
            a(f"v_subrev_u32 v250, s{S_TS}, v250")
            a(f"s_lshl_b32 s{S_TS}, s{S_WAVE}, 3")
            a("v_lshlrev_b32 v251, 2, v0")
            a("v_subrev_u32 v251, 8, v251")
            a("s_mov_b64 exec, 0x3fc")
            a(f"buffer_store_dword v250, v251, {A}, s{S_TS} offen")
            a(f"{lab}:")
            return
        a(f"s_mul_i32 s{S_TS}, s2, 5")
        a(f"s_add_u32 s{S_TS}, s{S_TS}, s{S_WAVE}")
        a(f"s_lshl_b32 s{S_TS}, s{S_TS}, {8 if str(self.stamps).startswith('prof') else 6}")
        a(f"s_add_u32 s{S_TS}, s{S_TS}, {WS_DBG:#x}")
        a("v_lshlrev_b32 v251, 2, v0")
        if not str(self.stamps).startswith("prof"):
            a("s_mov_b64 exec, 0xffff")
        a(f"buffer_store_dword v250, v251, {W}, s{S_TS} offen")

    def retry(self, label, sleep=0):
        if sleep:
            self.a(f"s_sleep {sleep}")
        self.a(f"s_add_u32 s{S_SPIN}, s{S_SPIN}, 1")
        self.a(f"s_cmp_lt_u32 s{S_SPIN}, {SPIN_CAP:#x}")
        self.a(f"s_cbranch_scc1 {label}")

    def allreduce(self, op, v, t):
        a = self.a
        for r in (8, 4, 2, 1):
            a("s_nop 1")
            a(f"{op}_dpp v{v}, v{v}, v{v} row_ror:{r} row_mask:0xf bank_mask:0xf")
        for sw in ("v_permlane16_swap_b32", "v_permlane32_swap_b32"):
            a(f"v_mov_b32 v{t}, v{v}")
            a("s_nop 1")
            a(f"{sw} v{v}, v{t}")
            a(f"{op} v{v}, v{v}, v{t}")

    def quad_col_reduce(self, vs, ts, rors=(4, 8)):
        a = self.a
        for r in rors:
            for v in vs:
                a(f"v_add_f32_dpp v{v}, v{v}, v{v} row_ror:{r} row_mask:0xf bank_mask:0xf")
        for sw in ("v_permlane16_swap_b32", "v_permlane32_swap_b32"):
            for v, t in zip(vs, ts):
                a(f"v_mov_b32 v{t}, v{v}")
            for v, t in zip(vs, ts):
                a(f"{sw} v{v}, v{t}")
            for v, t in zip(vs, ts):
                a(f"v_add_f32 v{v}, v{v}, v{t}")

    def rbf(self, v):
        self.a(f"v_cvt_pk_bf16_f32 v{v}, v{v}, v{v}")
        self.a(f"v_and_b32 v{v}, 0xffff0000, v{v}")

    def masks(self, m0, t0, t1):
        a = self.a
        a(f"v_and_b32 v{t0}, 1, v0")
        a(f"v_lshlrev_b32 v{t0}, 4, v{t0}")
        a(f"v_mov_b32 v{t1}, 0xffff")
        a(f"v_lshlrev_b32 v{t0}, v{t0}, v{t1}")
        a(f"v_bfe_u32 v{t1}, v0, 1, 2")
        for i in range(4):
            a(f"v_cmp_eq_u32 vcc, {i}, v{t1}")
            a("s_nop 1")
            a(f"v_cndmask_b32 v{m0 + i}, 0, v{t0}, vcc")

    def a_frag(self, dst, src):
        for d in range(4):
            self.a(f"v_and_b32 v{dst + d}, v{src}, v{2 + d}")

    def mfma(self, acc, fa, fb, first=False):
        c = "0" if first else f"v[{acc}:{acc + 3}]"
        self.a(f"v_mfma_f32_16x16x32_bf16 v[{acc}:{acc + 3}], v[{fa}:{fa + 3}], v[{fb}:{fb + 3}], {c}")

    def lds_flag_wait(self, name, off, sleep, value=1):
        a = self.a
        a(f"v_mov_b32 v20, {off}")
        a(f"L_{name}_wait:")
        a("ds_read_b32 v21, v20")
        a("s_waitcnt lgkmcnt(0)")
        a(f"v_readfirstlane_b32 s{S_T0}, v21")
        a(f"s_cmp_eq_u32 s{S_T0}, {value}")
        a(f"s_cbranch_scc1 L_{name}_ok")
        self.retry(f"L_{name}_wait", sleep)
        a(f"L_{name}_ok:")

    def lds_flag_set(self, off):
        self.a(f"v_mov_b32 v20, {off}")
        self.a("v_mov_b32 v21, 1")
        self.a("ds_write_b32 v20, v21")

    def load_tags(self):
        a = self.a
        a(f"s_add_u32 s{S_TAGA}, s{S_EP}, {TAG_A:#x}")
        a(f"s_add_u32 s{S_TAGB}, s{S_EP + 1}, {TAG_B:#x}")
        for i in range(4):
            a(f"s_lshr_b32 s{S_NIB + i}, s{S_TAGA}, {4 * i}")

    def tag_insert(self, r):
        for i in range(4):
            self.a(f"v_bfi_b32 v{r + i}, 15, s{S_NIB + i}, v{r + i}")

    def tag_check(self, granules, acc, t, quad=False, octet=False):
        a = self.a
        for k, r in enumerate(granules):
            for i in range(4):
                a(f"v_xor_b32 v{t + i}, s{S_NIB + i}, v{r + i}")
            a(f"v_or3_b32 v{t}, v{t}, v{t + 1}, v{t + 2}")
            if k == 0:
                a(f"v_or_b32 v{acc}, v{t}, v{t + 3}")
            else:
                a(f"v_or3_b32 v{acc}, v{acc}, v{t}, v{t + 3}")
        a(f"v_and_b32 v{acc}, 15, v{acc}")
        if quad:
            for qp in ("[1,0,3,2]", "[2,3,0,1]"):
                a("s_nop 1")
                a(f"v_or_b32_dpp v{acc}, v{acc}, v{acc} quad_perm:{qp} row_mask:0xf bank_mask:0xf")
        if octet:
            a("s_nop 1")
            a(f"v_or_b32_dpp v{acc}, v{acc}, v{acc} row_half_mirror row_mask:0xf bank_mask:0xf")
        a(f"v_cmp_ne_u32 vcc, 0, v{acc}")

    def tag_strip(self, lo, hi):
        for r in range(lo, hi):
            self.a(f"v_and_b32 v{r}, -16, v{r}")

    def frag_store_offset(self, dst, shift, t):
        a = self.a
        a(f"v_bfe_u32 v{dst}, v0, 1, 3")
        a(f"v_lshlrev_b32 v{dst}, {shift}, v{dst}")
        a(f"v_and_b32 v{t}, 1, v0")
        a(f"v_lshl_add_u32 v{dst}, v{t}, 5, v{dst}")
        a(f"v_and_b32 v{t}, 16, v0")
        a(f"v_add_u32 v{dst}, v{dst}, v{t}")

    def issue(self, n, report=False):
        a = self.a
        r = self.RING + 4 * (n % self.D)
        a(f"buffer_load_dwordx4 v[{r}:{r + 3}], v1, s[{S_CUR}:{S_CUR + 3}], s{S_SOFF} offen offset:{(n % 4) * 1024} {self.kv}")
        if n % 4 == 3:
            if self.twist:
                a(f"s_add_u32 s{S_ROW}, s{S_ROW}, 0x20000")
                a(f"s_and_b32 s{S_ROW}, s{S_ROW}, 0x7e0000")
                a(f"s_add_u32 s{S_POS}, s{S_POS}, {self.twist * 4096:#x}")
                a(f"s_and_b32 s{S_POS}, s{S_POS}, 0x1f000")
                a(f"s_or_b32 s{S_SOFF}, s{S_ROW}, s{S_POS}")
            else:
                a(f"s_add_u32 s{S_SOFF}, s{S_SOFF}, 0x20000")
                a(f"s_and_b32 s{S_SOFF}, s{S_SOFF}, 0x7fffff")
            a(f"s_or_b32 s{S_SOFF}, s{S_SOFF}, s{S_HB}")
            a(f"s_add_u32 s{S_CNT}, s{S_CNT}, 1")
            if self.stamps == "prof2":
                a(f"s_memrealtime s[{S_TS}:{S_TS + 1}]")
                a(f"s_add_u32 s{S_T2}, s{S_CNT}, 15")
                a(f"s_cmp_lt_u32 s{S_T2}, 64")
                a(f"s_cselect_b32 m0, s{S_T2}, 15")
                a("s_waitcnt lgkmcnt(0)")
                a(f"v_writelane_b32 v250, s{S_TS}, m0")
            if self.fc and report:
                a(f"v_mov_b32 v242, s{S_CNT}")
                a(f"ds_write_b32 v244, v242 offset:{L_PR}")
            a(f"s_cmp_eq_u32 s{S_CNT}, 64")
            a(f"s_cselect_b32 s{S_CUR}, s{S_V}, s{S_CUR}")
            a(f"s_cselect_b32 s{S_CUR + 1}, s{S_V + 1}, s{S_CUR + 1}")

    def k_consume(self, j):
        a = self.a
        r = self.RING + 4 * j
        p = 12 + j % 4
        a(f"v_dot2_f32_bf16 v{p}, v{r}, v6, 0")
        for d in range(1, 4):
            a(f"v_dot2_f32_bf16 v{p}, v{r + d}, v{6 + d}, v{p}")
        if j % 4 == 3:
            t = 16 + j % 16 // 4
            a("v_add_f32_dpp v12, v12, v12 row_ror:8 row_mask:0xf bank_mask:0x3")
            a("v_add_f32_dpp v12, v14, v14 row_ror:8 row_mask:0xf bank_mask:0xc")
            a("v_add_f32_dpp v13, v13, v13 row_ror:8 row_mask:0xf bank_mask:0x3")
            a("v_add_f32_dpp v13, v15, v15 row_ror:8 row_mask:0xf bank_mask:0xc")
            a(f"v_add_f32_dpp v{t}, v12, v12 row_shl:4 row_mask:0xf bank_mask:0x5")
            a("s_nop 0")
            a(f"v_add_f32_dpp v{t}, v13, v13 row_shr:4 row_mask:0xf bank_mask:0xa")
        if j % 16 == 15:
            qp1 = "quad_perm:[1,0,3,2] row_mask:0xf bank_mask:0xf"
            qp2 = "quad_perm:[2,3,0,1] row_mask:0xf bank_mask:0xf"
            for t in range(16, 20):
                a(f"v_add_f32_dpp v{t}, v{t}, v{t} {qp1}")
            a(f"v_cndmask_b32 v16, v16, v17, s[{S_ODD}:{S_ODD + 1}]")
            a(f"v_cndmask_b32 v18, v18, v19, s[{S_ODD}:{S_ODD + 1}]")
            a("s_nop 0")
            a(f"v_add_f32_dpp v16, v16, v16 {qp2}")
            a(f"v_add_f32_dpp v18, v18, v18 {qp2}")
            a(f"v_cndmask_b32 v20, v16, v18, s[{S_BIT1}:{S_BIT1 + 1}]")
            self.rbf(20)
            a(f"v_mul_f32 v20, s{S_SCALE}, v20")
            self.rbf(20)
            a("v_max_f32 v10, v10, v20")
            a("ds_write_b16_d16_hi v11, v20")
            a("v_add_u32 v11, 128, v11")

    def v_softmax(self):
        a = self.a
        a("s_waitcnt lgkmcnt(0)")
        self.level_masks()
        a(f"v_fma_f32 v20, v245, s{S_L2E}, v23")
        a("v_exp_f32 v20, v20")
        a("s_nop 0")
        a("v_cvt_pk_bf16_f32 v241, v20, v20")

    def v_consume(self, j):
        a = self.a
        src = 4 * (j % 4) + j % 16 // 4
        for d in range(4):
            a(f"v_and_b32_dpp v{28 + d}, v241, v{2 + d} row_newbcast:{src} row_mask:0xf bank_mask:0xf")
        a("s_nop 1")
        self.mfma(24, 28, self.RING + 4 * j)

    def step_wait(self, j, waits):
        a = self.a
        if not self.fc:
            a(f"s_waitcnt vmcnt({waits[j % len(waits)] - 1})")
            return
        self.nlab += 1
        lab = f"L_go{self.nlab}"
        j %= 16
        a(f"s_waitcnt vmcnt({self.nmax - 1})")
        a(f"s_bitcmp1_b32 s{S_M5}, {j}")
        a(f"s_cbranch_scc0 {lab}")
        a(f"s_waitcnt vmcnt({self.nmax - 2})")
        a(f"s_bitcmp1_b32 s{S_M4}, {j}")
        a(f"s_cbranch_scc0 {lab}")
        a(f"s_waitcnt vmcnt({self.nmax - 3})")
        a(f"{lab}:")

    def level_fetch(self):
        if self.fc:
            self.a(f"ds_read_b32 v246, v247 offset:{L_FL + 12}")

    def level_masks(self):
        if self.fc:
            self.a(f"v_cmp_le_i32 s[{S_M5}:{S_M5 + 1}], v246, v248")
            self.a(f"v_cmp_le_i32 s[{S_M4}:{S_M4 + 1}], v246, v249")

    def v_step(self, j, last=False):
        a = self.a
        if j % 16 == 0:
            self.v_softmax()
        if last and j + self.LA >= self.D:
            a(f"s_waitcnt vmcnt({self.D - 1 - j})")
        else:
            self.step_wait(j, self.waits)
            self.issue(j + self.LA, report=True)
        if last and j == self.D - 1:
            a("s_mov_b64 exec, 1")
            a("ds_add_rtn_u32 v21, v22, v19")
            a("s_mov_b64 exec, -1")
        self.v_consume(j)
        if j % 16 == 8 and not (last and j > 16):
            a("ds_read_u16_d16_hi v245, v22")
            a("v_add_u32 v22, 128, v22")
            self.level_fetch()

    def tail_fetch(self):
        a = self.a
        a(f"s_lshl_b32 s{S_T1}, s{S_WAVE}, 12")
        a(f"v_lshl_add_u32 v180, v0, 4, s{S_T1}")
        for j in range(4):
            a(f"ds_read_b128 v[{160 + 4 * j}:{163 + 4 * j}], v180 offset:{L_WF + 1024 * j}")
        a(f"s_lshl_b32 s{S_T1}, s{S_WAVE}, 10")
        a(f"v_lshl_add_u32 v181, v0, 4, s{S_T1}")
        a(f"ds_read_b128 v[176:179], v181 offset:{L_YF}")

    def tail_addresses(self):
        a = self.a
        a("v_and_b32 v182, 15, v0")
        a(f"v_lshlrev_b32 v182, {6 + self.pad}, v182")
        a("v_lshrrev_b32 v183, 4, v0")
        a("v_lshl_add_u32 v182, v183, 4, v182")
        a(f"s_lshl_b32 s79, s{S_SLOT}, {11 + self.pad}")
        a(f"s_add_u32 s79, s79, {WS_OX:#x}")
        if self.wide:
            a("v_bfe_u32 v183, v0, 2, 2")
            a("v_lshlrev_b32 v183, 15, v183")
            a("v_and_b32 v184, 3, v0")
            a("v_lshl_add_u32 v183, v184, 5, v183")
            a("v_and_b32 v184, 16, v0")
            a("v_add_u32 v183, v183, v184")
        else:
            self.frag_store_offset(183, 14, 184)
        a(f"s_lshl_b32 s75, s{S_SLOT}, {7 if self.wide else 6}")
        a(f"s_lshl_b32 s{S_T1}, s{S_WAVE}, 17")
        a(f"s_add_u32 s75, s75, s{S_T1}")
        a(f"s_add_u32 s75, s75, {WS_YA:#x}")

    def tail_project(self, name, lanes):
        a = self.a
        a(f"L_{name}_owait:")
        a(f"buffer_load_dwordx4 v[60:63], v182, {W}, s79 offen sc1 {self.nt_o}")
        a(f"buffer_load_dwordx4 v[64:67], v182, {W}, s79 offen offset:{1024 << self.pad} sc1 {self.nt_o}")
        a("s_waitcnt vmcnt(0)")
        self.tag_check([60, 64], 20, 68)
        self.c("a source row is spread over lanes 16 apart: keep polling all four while one is missing")
        a("s_or_b32 vcc_lo, vcc_lo, vcc_hi")
        a(f"s_lshr_b32 s{S_T0}, vcc_lo, 16")
        a(f"s_or_b32 s{S_T0}, s{S_T0}, vcc_lo")
        a(f"s_and_b32 s{S_T0}, s{S_T0}, 0xffff")
        a(f"s_cbranch_scc0 L_{name}_odone")
        a(f"s_mul_i32 exec_lo, s{S_T0}, 0x10001")
        a("s_mov_b32 exec_hi, exec_lo")
        self.retry(f"L_{name}_owait", self.o_sleep)
        a(f"L_{name}_odone:")
        a("s_mov_b64 exec, -1")
        self.stamp(5)
        self.tag_strip(60, 68)
        for i in range(4):
            a(f"v_add_f32 v{60 + i}, v{60 + i}, v{64 + i}")
        for r in (8, 4, 2, 1):
            for i in range(4):
                a(f"v_add_f32_dpp v{60 + i}, v{60 + i}, v{60 + i} row_ror:{r} row_mask:0xf bank_mask:0xf")
        for i in range(4):
            a(f"v_cvt_pk_bf16_f32 v{60 + i}, v{60 + i}, v{60 + i}")
        self.a_frag(68, 60)
        for j in range(4):
            if j < 3:
                self.a_frag(72 + 4 * j, 61 + j)
            else:
                a("s_nop 1")
            self.mfma(176, 68 + 4 * j, 160 + 4 * j)
        self.set_exec(lanes, 0)
        a("s_nop 5")
        self.tag_insert(176)
        a(f"buffer_store_dwordx4 v[176:179], v183, {W}, s75 offen sc1")
        a("s_mov_b64 exec, -1")

    def streamer(self):
        a, c, D, LA = self.a, self.c, self.D, self.LA
        c("---- streaming waves: K pass (scores), V pass (weighted sum) ----")
        a("v_lshlrev_b32 v1, 4, v0")
        a(f"s_lshl_b32 s{S_HB}, s{S_HEAD}, 23")
        a(f"s_lshl_b32 s{S_T0}, s{S_SPL}, 2")
        a(f"s_add_u32 s{S_T0}, s{S_T0}, s{S_WAVE}")
        a(f"s_lshl_b32 s{S_POS}, s{S_T0}, 12")
        a(f"s_mul_i32 s{S_ROW}, s{S_HEAD}, {self.rot * 1024}")
        a(f"s_and_b32 s{S_ROW}, s{S_ROW}, 0x7e0000")
        a(f"s_or_b32 s{S_SOFF}, s{S_ROW}, s{S_POS}")
        a(f"s_or_b32 s{S_SOFF}, s{S_SOFF}, s{S_HB}")
        a(f"s_mov_b32 s{S_CNT}, 0")
        a("s_waitcnt lgkmcnt(0)")
        self.srd(S_CUR, S_K, 0x10000000)
        a(f"s_and_b32 s{S_V + 1}, s{S_V + 1}, 0xffff")
        for n in range(self.early):
            self.issue(n)
        a(f"s_load_dwordx2 s[{S_EP}:{S_EP + 1}], s[{S_WS}:{S_WS + 1}], {WS_EP}")
        a("s_barrier")
        for n in range(self.early, self.pre_burst):
            self.issue(n)
        self.srd(S_W, S_WS, WS_SIZE)
        self.masks(2, 20, 21)
        a(f"s_mov_b32 s{S_ODD}, 0xaaaaaaaa")
        a(f"s_mov_b32 s{S_ODD + 1}, 0xaaaaaaaa")
        a(f"s_mov_b32 s{S_BIT1}, 0xcccccccc")
        a(f"s_mov_b32 s{S_BIT1 + 1}, 0xcccccccc")
        a(f"s_mov_b32 s{S_SCALE}, {SCALE:#x}")
        a(f"s_mov_b32 s{S_L2E}, {LOG2E:#x}")
        a("v_mov_b32 v10, 0xff800000")
        a(f"s_lshl_b32 s{S_T0}, s{S_WAVE}, 11")
        a(f"s_add_u32 s{S_T0}, s{S_T0}, {L_SC}")
        a(f"v_lshl_add_u32 v11, v0, 1, s{S_T0}")
        a("v_mov_b32 v22, v11")
        a("v_and_b32 v23, 15, v0")
        a("v_lshlrev_b32 v23, 4, v23")
        a("v_mov_b32 v245, 0")
        for i in range(24, 28):
            a(f"v_mov_b32 v{i}, 0")
        if self.fc:
            c("v248 / v249: thresholds of the throttle masks in bit-reversed step order")
            a("v_bfrev_b32 v248, v0")
            a("v_lshrrev_b32 v248, 28, v248")
            a("v_sub_u32 v249, 15, v248")
            a("v_add_u32 v248, 16, v249")
            a("v_mov_b32 v247, 0")
            a(f"s_lshl_b32 s{S_T0}, s{S_WAVE}, 8")
            a(f"v_lshl_add_u32 v244, v0, 2, s{S_T0}")
            a(f"v_mov_b32 v242, 0")
            a(f"ds_write_b32 v244, v242 offset:{L_PR}")
        self.frag_store_offset(243, 11 + self.pad, 20)
        if self.pad:
            a("v_and_b32 v20, 32, v0")
            a("v_lshl_add_u32 v243, v20, 1, v243")
        self.tail_addresses()
        a(f"s_lshl_b32 s{S_T1}, s{S_SPL}, 2")
        a(f"s_add_u32 s{S_T1}, s{S_T1}, s{S_WAVE}")
        a(f"s_lshl_b32 s{S_T1}, s{S_T1}, {6 + self.pad}")
        a(f"s_lshl_b32 s{S_LEAD}, s{S_HEAD}, {14 + self.pad}")
        a(f"s_add_u32 s{S_LEAD}, s{S_LEAD}, s{S_T1}")
        a(f"s_add_u32 s{S_LEAD}, s{S_LEAD}, {WS_OX:#x}")
        c("v238 / s80..s83: gather offsets of the final reduction")
        a(f"s_lshl_b32 s{S_T1}, s{S_WAVE}, 10")
        a(f"v_lshl_add_u32 v238, v0, 4, s{S_T1}")
        a(f"s_lshl_b32 s{S_T1}, s{S_RED}, {15 if self.wide else 14}")
        a(f"s_add_u32 s80, s{S_T1}, {WS_YA:#x}")
        for i in range(1, 4):
            a(f"s_add_u32 s{80 + i}, s80, {i * 4096}")
        a("v_add_u32 v239, 0x4000, v238")
        a(f"s_mov_b32 s{S_UNI}, 0")
        for n in range(self.pre_burst, LA):
            a(f"s_waitcnt vmcnt({self.pre_n - 1})")
            self.issue(n)
        self.stamp(1)
        self.lds_flag_wait("q", L_FL, 1)
        a(f"ds_read_b128 v[6:9], v23 offset:{L_QB}")
        self.load_tags()
        a("s_waitcnt lgkmcnt(0)")
        self.stamp(2)
        a(f"s_mov_b32 s{S_IT}, 0")
        self.level_fetch()
        a("L_kloop:")
        for j in range(D):
            if self.fc and j % 16 == 0:
                a("s_waitcnt lgkmcnt(0)")
                self.level_masks()
                a("s_nop 3")
            self.step_wait(j, self.waits)
            self.issue(j + LA, report=True)
            self.k_consume(j)
            if j % 16 == 8:
                self.level_fetch()
        self.stamp_body(16)
        a(f"s_add_u32 s{S_IT}, s{S_IT}, 1")
        a(f"s_cmp_lt_u32 s{S_IT}, {256 // D}")
        a("s_cbranch_scc1 L_kloop")
        self.stamp(3)
        c("wave maximum of the scores")
        a("ds_read_u16_d16_hi v245, v22")
        a("v_add_u32 v22, 128, v22")
        self.allreduce("v_max_f32", 10, 20)
        a(f"v_mul_f32_e64 v23, -v10, s{S_L2E}")
        a("v_min_u32 v10, -2, v10")
        a(f"s_lshl_b32 s{S_T0}, s{S_WAVE}, 2")
        a(f"v_mov_b32 v240, s{S_T0}")
        a("s_mov_b64 exec, 1")
        a(f"ds_write_b32 v240, v10 offset:{L_MS}")
        a("s_mov_b64 exec, -1")
        a(f"s_mov_b32 s{S_IT}, 0")
        a("L_vloop:")
        for j in range(D):
            self.v_step(j)
        self.stamp_body(32)
        a(f"s_add_u32 s{S_IT}, s{S_IT}, 1")
        a(f"s_cmp_lt_u32 s{S_IT}, {256 // D - 2}")
        a("s_cbranch_scc1 L_vloop")
        a(f"s_cmp_eq_u32 s{S_IT}, {256 // D - 2}")
        a("s_cbranch_scc0 L_vlast")
        c("one body ahead of the end: fetch everything the tail needs")
        self.lds_flag_wait("scale", L_FL + 4, 2)
        a(f"ds_read_b32 v10, v240 offset:{L_SCL}")
        a(f"ds_read_b32 v21, v20 offset:{L_SCL + 16 - L_FL - 4}")
        self.tail_fetch()
        a("s_waitcnt lgkmcnt(0)")
        a(f"v_readfirstlane_b32 s{S_UNI}, v21")
        a("s_branch L_vloop")
        a("L_vlast:")
        c("last V body")
        for j in range(D):
            self.v_step(j, last=True)
            if j == 17:
                a(f"v_mov_b32 v22, {L_FL + 8}")
                a("v_mov_b32 v19, 1")
        self.stamp(4)
        c("send each 16-column slice of this wave's normalised partial o to its owner in the head group")
        a("s_nop 0" if self.pad else "s_mov_b32 exec_hi, 0")
        a("s_nop 6")
        for i in range(24, 28):
            a(f"v_mul_f32 v{i}, v10, v{i}")
        self.tag_insert(24)
        self.group_store([f"buffer_store_dwordx4 v[24:27], v243, {W}, s{S_LEAD} offen"])
        a("s_mov_b64 exec, -1")
        a("s_waitcnt lgkmcnt(0)")
        a(f"v_readfirstlane_b32 s{S_T0}, v21")
        a(f"s_cmp_eq_u32 s{S_T0}, 3")
        a("s_cbranch_scc1 L_peers_ok")
        self.lds_flag_wait("peers", L_FL + 8, 1, 4)
        self.tail_project("s", 0xFFFFFFFF)
        self.stamp(7)
        a(f"s_cmp_lt_u32 s{S_RED}, {self.nred}")
        a("s_cbranch_scc0 L_finish")
        G = 8 if self.wide else 4
        c(f"---- final reduction of {4 * G} output columns over all 256 workgroups ----")
        a(f"s_mul_i32 s{S_T0}, s{S_RED}, {8 * G}")
        a(f"v_lshl_add_u32 v11, v0, 3, s{S_T0}")
        a(f"ds_read_b128 v[6:9], v1 offset:{L_FN}")
        self.srd(S_A, S_OUT, 1152)
        a("L_gather:")
        for i in range(G):
            a(f"buffer_load_dwordx4 v[{40 + 4 * i}:{43 + 4 * i}], v{238 if i < 4 else 239}, {W}, s{80 + i % 4} offen sc1 {self.nt_fin}")
        a("s_waitcnt vmcnt(0)")
        self.tag_check([40 + 4 * i for i in range(G)], 20, 32, quad=True, octet=self.wide)
        a("s_and_b64 exec, exec, vcc")
        a("s_cbranch_execz L_gathered")
        self.retry("L_gather", self.o_sleep)
        a("L_gathered:")
        a("s_mov_b64 exec, -1")
        self.stamp(8)
        self.tag_strip(40, 40 + 4 * G)
        step = 1
        while step < G:
            for k in range(0, G, 2 * step):
                for i in range(4):
                    a(f"v_add_f32 v{40 + 4 * k + i}, v{40 + 4 * k + i}, v{40 + 4 * (k + step) + i}")
            step *= 2
        self.quad_col_reduce([40, 41, 42, 43], [44, 45, 46, 47], (8,) if self.wide else (4, 8))
        a(f"s_mul_i32 s{S_T0}, s{S_WAVE}, {16 * G}")
        a(f"v_lshl_add_u32 v20, v0, 4, s{S_T0}")
        a(f"s_mov_b64 exec, {(1 << G) - 1}")
        a(f"ds_write_b128 v20, v[40:43] offset:{L_RP}")
        a("s_waitcnt lgkmcnt(0)")
        a("s_barrier")
        a(f"s_cmp_eq_u32 s{S_WAVE}, 0")
        a("s_cbranch_scc0 L_finish")
        for w in range(4):
            a(f"ds_read_b128 v[{32 + 4 * w}:{35 + 4 * w}], v20 offset:{L_RP + w * 16 * G}")
        for w in range(4):
            a(f"s_waitcnt lgkmcnt({3 - w})")
            for i in range(4):
                a(f"v_add_f32 v{6 + i}, v{6 + i}, v{32 + 4 * w + i}")
        if self.perturb:
            import struct
            bits = struct.unpack("<I", struct.pack("<f", self.perturb[0]))[0]
            a(f"s_cmp_lt_u32 s{S_RED}, {self.perturb[1]}")
            a(f"s_cselect_b32 s{S_T0}, {bits:#x}, 0")
            for i in range(4):
                a(f"v_add_f32 v{6 + i}, s{S_T0}, v{6 + i}")
        a("v_cvt_pk_bf16_f32 v32, v6, v7")
        a("v_cvt_pk_bf16_f32 v33, v8, v9")
        a(f"buffer_store_dwordx2 v[32:33], v11, {A}, 0 offen")
        a(f"s_cmp_eq_u32 s{S_RED}, 0")
        a("s_cbranch_scc0 L_finish")
        c("every workgroup has consumed the epoch words: advance them")
        a("s_mov_b64 exec, 1")
        a(f"v_mov_b32 v22, s{S_TAGA}")
        a(f"v_mov_b32 v23, s{S_TAGB}")
        a(f"buffer_store_dwordx2 v[22:23], v20, {W}, 0 offen offset:{WS_EP}")
        a("L_finish:")
        self.stamp(9)
        self.stamp_flush()
        a("s_endpgm")

    def pace(self):
        if self.w_depth:
            self.a(f"s_waitcnt vmcnt({self.w_depth - 1})")

    def group_store(self, instrs):
        a = self.a
        self.nlab += 1
        n = self.nlab
        a(f"s_cmp_eq_u32 s{S_UNI}, 1")
        a(f"s_cbranch_scc1 L_near{n}")
        for x in instrs:
            a(x + (" sc1" if x.startswith("buffer_store") else ""))
        a(f"s_branch L_sent{n}")
        a(f"L_near{n}:")
        for x in instrs:
            a(x)
        a(f"L_sent{n}:")

    def inbox_fill(self, flags):
        for k in range(2):
            self.a(f"buffer_store_dwordx4 v[252:255], v6, {W}, s83 offen offset:{1024 * k} {flags}")

    def resolve_ids(self):
        a = self.a
        self.nlab += 1
        n = self.nlab
        a(f"s_cmp_eq_u32 s{S_UNI}, 2")
        a(f"s_cbranch_scc0 L_known{n}")
        a(f"v_xor_b32 v57, s{S_TAGA}, v57")
        a(f"v_xor_b32 v59, s{S_TAGB}, v59")
        a("v_or_b32 v57, v57, v59")
        a("v_cmp_ne_u32 vcc, 0, v57")
        a("s_and_b64 vcc, vcc, exec")
        a(f"s_cbranch_scc0 L_all{n}")
        a(f"buffer_load_dwordx4 v[56:59], v19, {W}, s81 offen sc1 {self.nt_poll}")
        a(f"s_branch L_known{n}")
        a(f"L_all{n}:")
        a(f"v_cmp_ne_u32 vcc, s{S_XCC}, v56")
        a("s_and_b64 vcc, vcc, exec")
        a(f"s_cselect_b32 s{S_UNI}, 0, {int(self.fast)}")
        a(f"s_cbranch_scc0 L_known{n}")
        if self.warm == "init" and self.fast:
            self.inbox_fill("sc1")
            a("s_waitcnt vmcnt(0)")
        a("s_mov_b32 exec_hi, 0")
        a(f"buffer_store_dwordx4 v[80:83], v18, {W}, s82 offen sc1")
        a("s_mov_b64 exec, -1")
        a(f"L_known{n}:")

    def prepoll(self, name, soff, stride, sleep):
        a = self.a
        a(f"v_mul_u32_u24 v52, {stride}, v0")
        a("s_mov_b64 exec, 0xff")
        a(f"L_{name}_pre:")
        a(f"buffer_load_dwordx4 v[20:23], v52, {W}, s{soff} offen sc1 {self.nt_poll}")
        a("s_waitcnt vmcnt(0)")
        self.tag_check([20], 53, 24)
        a("s_and_b64 exec, exec, vcc")
        a(f"s_cbranch_execz L_{name}_seen")
        self.retry(f"L_{name}_pre", sleep)
        a(f"L_{name}_seen:")
        a("s_mov_b64 exec, -1")

    def record_gather(self, name, soff, stride, tail=False, on_retry=None):
        a = self.a
        a("v_lshrrev_b32 v52, 5, v0")
        a(f"v_mul_u32_u24 v52, {stride}, v52")
        a("v_and_b32 v53, 31, v0")
        a("v_lshl_add_u32 v52, v53, 4, v52")
        if tail:
            a("v_lshrrev_b32 v54, 2, v53")
            a(f"v_mul_u32_u24 v54, {stride}, v54")
            a("v_and_b32 v53, 3, v0")
            a("v_lshl_add_u32 v54, v53, 4, v54")
        a(f"L_{name}_poll:")
        for k in range(4):
            a(f"buffer_load_dwordx4 v[{20 + 4 * k}:{23 + 4 * k}], v52, {W}, s{soff} offen offset:{2 * stride * k} sc1 {self.nt_poll}")
        if tail:
            a(f"buffer_load_dwordx4 v[36:39], v54, {W}, s{soff} offen offset:512 sc1 {self.nt_poll}")
        a("s_waitcnt vmcnt(0)")
        self.tag_check([20, 24, 28, 32] + ([36] if tail else []), 53, 40)
        a("s_and_b64 vcc, vcc, exec")
        a(f"s_cbranch_scc0 L_{name}_done")
        if on_retry:
            on_retry()
        self.retry(f"L_{name}_poll")
        a(f"L_{name}_done:")
        self.tag_strip(20, 40 if tail else 36)
        for i in range(4):
            a(f"v_add_f32 v{20 + i}, v{20 + i}, v{24 + i}")
        for i in range(4):
            a(f"v_add_f32 v{28 + i}, v{28 + i}, v{32 + i}")
        for i in range(4):
            a(f"v_add_f32 v{20 + i}, v{20 + i}, v{28 + i}")
        for i in range(4):
            a(f"v_mov_b32 v{24 + i}, v{20 + i}")
        for i in range(4):
            a(f"v_permlane32_swap_b32 v{20 + i}, v{24 + i}")
        for i in range(4):
            a(f"v_add_f32 v{20 + i}, v{20 + i}, v{24 + i}")
        if tail:
            for r in (4, 8):
                for i in range(4):
                    a(f"v_add_f32_dpp v{36 + i}, v{36 + i}, v{36 + i} row_ror:{r} row_mask:0xf bank_mask:0xf")
            for i in range(4):
                a(f"v_mov_b32 v{40 + i}, v{36 + i}")
            for i in range(4):
                a(f"v_permlane16_swap_b32 v{36 + i}, v{40 + i}")
            for i in range(4):
                a(f"v_add_f32 v{36 + i}, v{36 + i}, v{40 + i}")

    def row_frag_loads(self, rows, voff, dst):
        a = self.a
        for j in range(rows):
            for b in range(4):
                r = dst + 4 * (5 * j + b)
                self.pace()
                a(f"buffer_load_dwordx4 v[{r}:{r + 3}], v{voff}, {B}, s{S_T0} offen offset:{256 * b} {self.w_flags}")
            r = dst + 4 * (5 * j + 4)
            self.set_exec(0x00FF00FF, 0x00FF00FF)
            a(f"buffer_load_dwordx4 v[{r}:{r + 3}], v{voff}, {B}, s{S_T0} offen offset:1024 {self.w_flags}")
            a("s_mov_b64 exec, -1")
            if j < rows - 1:
                a(f"s_add_u32 s{S_T0}, s{S_T0}, 1152")

    def row_frag_project(self, rows, aval, src, first):
        for j in range(rows):
            self.a_frag(84 + 4 * (j % 2), aval + j)
            self.a("s_nop 1")
            for b in range(5):
                self.mfma(200 + 4 * b, 84 + 4 * (j % 2), src + 4 * (5 * j + b), first=(first and j == 0))

    def fc_setup(self):
        if not self.fc:
            return
        a = self.a
        a(f"s_and_b32 s{S_T1}, s{S_XCC}, 7")
        a(f"s_lshl_b32 s95, s{S_T1}, 8")
        a(f"s_add_u32 s95, s95, {WS_PX:#x}")
        a(f"s_lshl_b32 s{S_T1}, s{S_T1}, 3")
        a(f"v_mov_b32 v225, s{S_T1}")
        a("v_and_b32 v220, 3, v0")
        a("v_lshlrev_b32 v220, 8, v220")
        a("v_and_b32 v221, 7, v0")
        a("v_lshlrev_b32 v221, 3, v221")
        a("v_and_b32 v229, 31, v0")
        a("v_lshlrev_b32 v229, 2, v229")
        a("s_lshr_b32 s89, s2, 3")
        a(f"s_lshl_b32 s{S_T1}, s89, 2")
        a(f"v_mov_b32 v224, s{S_T1}")
        a("v_mov_b32 v228, 0")
        a(f"s_and_b32 s91, s{S_TAGA}, 0xffff0000")
        a(f"v_mov_b32 v239, s{S_TAGA}")
        a(f"v_mov_b32 v245, s{S_TAGA}")
        a(f"s_mov_b32 s{S_PREV}, -1")
        a(f"v_mov_b32 v241, {f32(self.l0 + 0.5):#x}")
        if self.par:
            a(f"s_mov_b32 s{S_T1}, {f32(self.par):#x}")
            a(f"s_bitcmp1_b32 s{S_XCC}, 0")
            a(f"s_cselect_b32 s{S_T1}, {f32(-self.par):#x}, s{S_T1}")
            a(f"v_add_f32 v241, s{S_T1}, v241")
        a(f"s_mov_b32 s90, {WS_GX:#x}")
        self.c("workgroup b >> 3 = k of every XCD is in charge of progress mark k")
        a(f"s_mul_i32 s{S_MARK}, s89, {self.mark_step}")
        a(f"s_add_u32 s{S_MARK}, s{S_MARK}, {self.mark0}")
        a(f"s_cmp_gt_u32 s{S_MARK}, {self.mark_end}")
        a(f"s_cselect_b32 s{S_MARK}, 0x1000, s{S_MARK}")
        a(f"s_mov_b32 s{S_PUB}, s{S_MARK}")
        a("v_mov_b32 v242, 0")
        a("v_mov_b32 v243, 0")
        a("v_mov_b32 v244, 0")
        a(f"s_mov_b32 s{S_NAP}, 1")
        if self.g2:
            a("s_cmp_eq_u32 s89, 0")
            a("s_cbranch_scc0 L_flow_ready")
            a("s_mov_b64 exec, 1")
            a(f"buffer_store_dwordx2 v[244:245], v228, {W}, s95 offen offset:128")
            a("s_mov_b64 exec, -1")
            a("L_flow_ready:")

    def fc_own(self):
        a = self.a
        a(f"ds_read_b32 v222, v220 offset:{L_PR}")
        a("s_waitcnt lgkmcnt(0)")
        for qp in ("[1,0,3,2]", "[2,3,0,1]"):
            a(f"v_add_u32_dpp v222, v222, v222 quad_perm:{qp} row_mask:0xf bank_mask:0xf")
            a("s_nop 1")

    def fc_publish(self):
        self.a("v_or_b32 v223, s91, v222")
        self.a("s_mov_b64 exec, 1")
        self.a(f"buffer_store_dword v223, v224, {W}, s95 offen")
        self.a("s_mov_b64 exec, -1")

    def fc_step(self):
        self.a(f"s_call_b64 s[{S_RET}:{S_RET + 1}], L_flow")

    def fc_routine(self):
        if not self.fc:
            return
        a = self.a
        a("L_flow:")
        self.fc_own()
        a(f"v_readfirstlane_b32 s{S_OWN}, v222")
        self.fc_publish()
        a(f"buffer_load_dword v230, v229, {W}, s95 offen sc1")
        if self.g2:
            a(f"buffer_load_dwordx2 v[232:233], v228, {W}, s95 offen offset:128 sc1")
            a(f"s_cmp_eq_u32 s{S_NAP}, 0")
            a("s_cbranch_scc0 L_flow_local")
            a(f"buffer_load_dwordx2 v[226:227], v221, {W}, s90 offen sc1")
            a("L_flow_local:")
        a(f"s_cmp_eq_u32 s{S_PREV}, -1")
        a(f"s_cselect_b32 s{S_PREV}, s{S_OWN}, s{S_PREV}")
        a(f"s_add_u32 s{S_PREV}, s{S_PREV}, s{S_OWN}")
        a("s_waitcnt vmcnt(0)")
        a("v_xor_b32 v234, s91, v230")
        a("v_cmp_gt_u32 vcc, 0x10000, v234")
        a("v_or_b32 v234, 0x100000, v234")
        a("s_nop 0")
        a("v_cndmask_b32 v234, 0, v234, vcc")
        for r in (8, 4, 2, 1):
            a("s_nop 1")
            a(f"v_add_u32_dpp v234, v234, v234 row_ror:{r} row_mask:0xf bank_mask:0xf")
        a("v_mov_b32 v235, v234")
        a("s_nop 1")
        a("v_permlane16_swap_b32 v234, v235")
        a("v_add_u32 v234, v234, v235")
        a("v_lshrrev_b32 v235, 20, v234")
        a("v_and_b32 v234, 0xfffff, v234")
        a("v_cvt_f32_u32 v235, v235")
        a("v_cvt_f32_u32 v234, v234")
        a("v_rcp_f32 v235, v235")
        a(f"v_cmp_eq_u32 vcc, s{S_TAGA}, v233")
        a("v_mul_f32 v238, v234, v235")
        a(f"v_cvt_f32_u32 v235, s{S_PREV}")
        a("v_fma_f32 v234, v235, -0.5, v238")
        a(f"v_mul_f32 v234, {f32(self.gain):#x}, v234")
        a("v_add_f32 v234, v234, v241")
        if self.g2:
            a("v_cndmask_b32 v232, 0, v232, vcc")
            a("v_add_f32 v234, v234, v232")
        a("v_cvt_i32_f32 v234, v234")
        a("v_cvt_u32_f32 v235, v238")
        a("s_mov_b64 exec, 1")
        a(f"ds_write_b32 v228, v234 offset:{L_FL + 12}")
        a("s_mov_b64 exec, -1")
        a(f"s_mov_b32 s{S_PREV}, s{S_OWN}")
        if self.g2:
            a(f"v_readfirstlane_b32 s{S_MEAN}, v235")
            a(f"s_sub_u32 s{S_T1}, s{S_MEAN}, s{S_MARK}")
            a(f"s_cmp_eq_u32 s{S_NAP}, 0")
            a("s_cbranch_scc1 L_flow_watch")
            self.c("start watching the other XCDs shortly before this XCD reaches the mark")
            a(f"s_cmp_ge_i32 s{S_T1}, {-self.mark_lead}")
            a(f"s_cselect_b32 s{S_NAP}, 0, 1")
            a("s_branch L_flow_done")
            a("L_flow_watch:")
            a(f"s_cmp_ge_u32 s{S_MEAN}, s{S_PUB}")
            a("s_cbranch_scc0 L_flow_seen")
            a(f"v_mov_b32 v238, s{S_MEAN}")
            a(f"s_mov_b32 s{S_PUB}, -1")
            a("s_mov_b64 exec, 1")
            a(f"buffer_store_dwordx2 v[238:239], v225, {W}, s90 offen sc1")
            a("s_mov_b64 exec, -1")
            a("L_flow_seen:")
            self.c("v242: own mean minus the announced mean when an XCD's announcement first shows, v243: 1.0 once seen")
            a(f"v_cmp_eq_u32 vcc, s{S_TAGA}, v227")
            a(f"v_cmp_le_u32 s[{S_T2}:{S_T3}], s{S_MARK}, v226")
            a(f"s_and_b64 vcc, vcc, s[{S_T2}:{S_T3}]")
            a(f"v_cmp_eq_f32 s[{S_T2}:{S_T3}], 0, v243")
            a(f"s_and_b64 vcc, vcc, s[{S_T2}:{S_T3}]")
            a(f"v_sub_u32 v235, s{S_MEAN}, v226")
            a("v_cvt_f32_i32 v235, v235")
            a("v_cndmask_b32 v242, v242, v235, vcc")
            a("v_cndmask_b32 v243, v243, 1.0, vcc")
            a("v_cmp_eq_f32 vcc, 0, v243")
            a("s_and_b64 vcc, vcc, exec")
            a("s_cbranch_scc0 L_flow_round")
            a(f"s_cmp_ge_i32 s{S_T1}, {self.mark_lead + 16}")
            a("s_cbranch_scc0 L_flow_done")
            a("L_flow_round:")
            for r in (4, 2, 1):
                a(f"v_add_f32_dpp v242, v242, v242 row_ror:{r} row_mask:0xf bank_mask:0xf")
                a(f"v_add_f32_dpp v243, v243, v243 row_ror:{r} row_mask:0xf bank_mask:0xf")
                a("s_nop 0")
            a("v_max_f32 v243, 1.0, v243")
            a("v_rcp_f32 v243, v243")
            a(f"v_mov_b32 v244, {f32(self.typ):#x}")
            a("v_fma_f32 v244, -v242, v243, v244")
            a(f"v_mul_f32 v244, {f32(self.g2):#x}, v244")
            a("s_mov_b64 exec, 1")
            a(f"buffer_store_dwordx2 v[244:245], v228, {W}, s95 offen offset:128")
            a("s_mov_b64 exec, -1")
            if self.stamps is True:
                a("v_mul_f32 v242, v242, v243")
                a("v_rcp_f32 v243, v243")
                a("v_cvt_i32_f32 v242, v242")
                a("v_cvt_i32_f32 v243, v243")
                a("v_add_u32 v242, 1000, v242")
                a("v_lshl_add_u32 v242, v243, 16, v242")
                a("s_nop 0")
                a(f"v_readfirstlane_b32 s{S_T1}, v242")
                a("s_nop 3")
                a(f"v_writelane_b32 v250, s{S_T1}, 10")
            a(f"s_mov_b32 s{S_MARK}, 0x1000")
            a(f"s_mov_b32 s{S_NAP}, 1")
            a("L_flow_done:")
            a(f"s_cmp_eq_u32 s{S_NAP}, 0")
            a("s_cbranch_scc1 L_flow_exit")
        a(f"s_sleep {self.fc_sleep}")
        a("L_flow_exit:")
        a(f"s_setpc_b64 s[{S_RET}:{S_RET + 1}]")

    def gelu(self, v, t0, t1):
        a = self.a
        a(f"v_mul_f32 v{t0}, v{v}, v{v}")
        a(f"v_mul_f32 v{t0}, v{t0}, v{v}")
        a(f"v_mov_b32 v{t1}, v{v}")
        a(f"v_fmac_f32 v{t1}, 0x3d372713, v{t0}")
        a(f"v_mul_f32 v{t1}, 0xc0135761, v{t1}")
        a(f"v_exp_f32 v{t1}, v{t1}")
        a("s_nop 0")
        a(f"v_add_f32 v{t1}, 1.0, v{t1}")
        a(f"v_rcp_f32 v{t1}, v{t1}")
        a("s_nop 0")
        a(f"v_mul_f32 v{v}, v{v}, v{t1}")
        a(f"v_cvt_pk_bf16_f32 v{v}, v{v}, v{v}")

    def helper(self):
        a, c = self.a, self.c
        a("L_helper:")
        c("---- helper wave: layernorm, q / FFN projections and their exchanges, output projection ----")
        a("v_lshlrev_b32 v1, 2, v0")
        a("v_lshrrev_b32 v8, 4, v0")
        a("v_and_b32 v9, 15, v0")
        a("v_lshlrev_b32 v9, 4, v9")
        a("v_mul_u32_u24 v7, 147456, v8")
        a("v_add_u32 v7, v7, v9")
        a("v_mul_u32_u24 v16, 165888, v8")
        a("v_add_u32 v16, v16, v9")
        a(f"s_mul_i32 s{S_T0}, s{S_SPL}, 589824")
        a(f"s_lshl_b32 s{S_T1}, s{S_HEAD}, 8")
        a(f"s_add_u32 s{S_T0}, s{S_T0}, s{S_T1}")
        a(f"s_mul_i32 s79, s{S_SPL}, 663552")
        a(f"s_mul_i32 s{S_T1}, s{S_HEAD}, 288")
        a(f"s_add_u32 s79, s79, s{S_T1}")
        for i in range(4):
            a(f"v_mov_b32 v{20 + i}, -1")
            a(f"v_mov_b32 v{24 + i}, 0")
        a(f"v_mov_b32 v27, {self.l0}")
        a("s_mov_b64 exec, 1")
        a(f"ds_write_b128 v1, v[20:23] offset:{L_MS}")
        a(f"ds_write_b128 v1, v[24:27] offset:{L_FL}")
        a(f"ds_write_b64 v1, v[24:25] offset:{L_HR + 72}")
        a("s_mov_b64 exec, -1")
        a("s_waitcnt lgkmcnt(0)")
        if self.warm == "first":
            c("pull the o inbox into L2 while memory is still idle; it stays there until the tail")
            self.srd(S_W, S_WS, WS_SIZE)
            a(f"s_lshl_b32 s83, s{S_SLOT}, 11")
            a(f"s_add_u32 s83, s83, {WS_OX:#x}")
            a("v_lshlrev_b32 v50, 7, v0")
            a("s_mov_b64 exec, 0xffff")
            a(f"buffer_load_dword v51, v50, {W}, s83 offen")
            a("s_mov_b64 exec, -1")
        self.srd(S_A, S_X, 1152)
        for i in range(5):
            a(f"buffer_load_dword v{10 + i}, v1, {A}, 0 offen offset:{256 * i} {self.nt_small}")
        a(f"s_mul_i32 s{S_T1}, s{S_SPL}, 144")
        a(f"buffer_load_dword v15, v1, {A}, s{S_T1} offen {self.nt_small}")
        self.srd(S_B, S_WQ, 4718592)
        for j in range(18):
            a(f"buffer_load_dwordx4 v[{96 + 4 * j}:{99 + 4 * j}], v7, {B}, s{S_T0} offen {self.w_flags}")
            if j < 17:
                a(f"s_add_u32 s{S_T0}, s{S_T0}, 8192")
        a("s_barrier")
        a(f"s_load_dwordx2 s[{S_EP}:{S_EP + 1}], s[{S_WS}:{S_WS + 1}], {WS_EP}")
        self.srd(S_W, S_WS, WS_SIZE)
        self.masks(2, 20, 21)
        a(f"s_mov_b32 s{S_L2E}, {LOG2E:#x}")
        a(f"s_mov_b32 s{S_ODD}, -1")
        a(f"s_mov_b32 s{S_ODD + 1}, 0")
        a("v_lshlrev_b32 v6, 4, v0")
        a("v_lshlrev_b32 v54, 3, v0")
        a("v_mul_u32_u24 v55, 72, v8")
        if self.tlb:
            c("touch the head's K and V pages once so that later page crossings find their translations")
            a(f"s_lshl_b32 s{S_T0}, s{S_HEAD}, 23")
            a("v_lshlrev_b32 v50, 21, v0")
            a("s_mov_b64 exec, 15")
            self.srd(S_A, S_K, 0x10000000)
            a(f"buffer_load_dword v51, v50, {A}, s{S_T0} offen nt")
            self.srd(S_A, S_V, 0x10000000)
            a(f"buffer_load_dword v51, v50, {A}, s{S_T0} offen nt")
            a("s_mov_b64 exec, -1")
        c("announce this workgroup's XCD to its head group")
        a(f"s_getreg_b32 s{S_XCC}, hwreg(HW_REG_XCC_ID, 0, 4)")
        a("v_and_b32 v19, 7, v0")
        a("v_lshlrev_b32 v19, 4, v19")
        a(f"s_lshl_b32 s{S_T0}, s{S_SLOT}, 4")
        a(f"s_add_u32 s{S_T0}, s{S_T0}, {WS_IX:#x}")
        a(f"s_lshl_b32 s81, s{S_HEAD}, 7")
        a(f"s_add_u32 s81, s81, {WS_IX:#x}")
        a(f"v_mov_b32 v92, s{S_XCC}")
        a(f"v_mov_b32 v94, s{S_XCC}")
        a("s_waitcnt lgkmcnt(0)")
        self.load_tags()
        a(f"v_mov_b32 v93, s{S_TAGA}")
        a(f"v_mov_b32 v95, s{S_TAGB}")
        a("s_mov_b64 exec, 1")
        a(f"buffer_store_dwordx4 v[92:95], v6, {W}, s{S_T0} offen sc1")
        a("s_mov_b64 exec, -1")
        init = self.warm == "init" and self.fast
        if init:
            c("fill the o inbox with untagged words: whole-line stores make it L2 resident without a memory fill")
            a(f"s_not_b32 s{S_T0}, s{S_NIB}")
            for i in range(4):
                a(f"v_mov_b32 v{252 + i}, s{S_T0}")
            a(f"s_lshl_b32 s83, s{S_SLOT}, 11")
            a(f"s_add_u32 s83, s83, {WS_OX:#x}")
            self.inbox_fill("")
        if self.warm and self.warm not in ("o", "init", "first"):
            c("pull this workgroup's q and pre-activation record lines into L2 ahead of the exchange")
            a(f"s_lshl_b32 s{S_T0}, s{S_SLOT}, 9")
            a(f"s_add_u32 s{S_T0}, s{S_T0}, {WS_QX:#x}")
            a(f"s_mul_i32 s{S_T1}, s{S_SLOT}, 576")
            a(f"s_add_u32 s{S_T1}, s{S_T1}, {WS_HX:#x}")
            a("v_lshlrev_b32 v50, 6, v0")
            a("s_mov_b64 exec, 0xff")
            a(f"buffer_load_dword v51, v50, {W}, s{S_T0} offen sc1 {self.nt_warm}")
            a("s_mov_b64 exec, 0x1ff")
            a(f"buffer_load_dword v51, v50, {W}, s{S_T1} offen sc1 {self.nt_warm}")
            if self.warm == "start":
                a(f"s_lshl_b32 s{S_T0}, s{S_SLOT}, 11")
                a(f"s_add_u32 s{S_T0}, s{S_T0}, {WS_OX:#x}")
                a("s_mov_b32 exec_lo, -1")
                a(f"buffer_load_dword v51, v50, {W}, s{S_T0} offen sc1")
            a("s_mov_b64 exec, -1")
        c("v18: byte offset of this lane's accumulator granule inside a record")
        a("v_and_b32 v18, 16, v0")
        a("v_lshl_add_u32 v18, v9, 1, v18")
        nw = (2 if self.warm and self.warm not in ("o", "init", "first") else 0) + 2 * init + (2 if self.tlb else 0) + (self.warm == "start")
        a(f"s_waitcnt vmcnt({19 + nw})")
        self.stamp(1)
        c("layernorm with the reference's bf16 rounding points")
        for i in range(5):
            a(f"v_lshlrev_b32 v{20 + 2 * i}, 16, v{10 + i}")
            a(f"v_and_b32 v{21 + 2 * i}, 0xffff0000, v{10 + i}")
        a("v_add_f32 v30, v20, v21")
        for i in range(22, 30):
            a(f"v_add_f32 v30, v30, v{i}")
        self.allreduce("v_add_f32", 30, 31)
        a("v_mul_f32 v32, 0x3ae38e39, v30")
        for i in range(10):
            a(f"v_sub_f32 v{40 + i}, v{20 + i}, v32")
        a(f"v_cndmask_b32 v48, 0, v48, s[{S_ODD}:{S_ODD + 1}]")
        a(f"v_cndmask_b32 v49, 0, v49, s[{S_ODD}:{S_ODD + 1}]")
        a("v_mul_f32 v30, v40, v40")
        for i in range(41, 50):
            a(f"v_fmac_f32 v30, v{i}, v{i}")
        self.allreduce("v_add_f32", 30, 31)
        a("v_mul_f32 v33, 0x3ae38e39, v30")
        self.rbf(32)
        self.rbf(33)
        a("v_add_f32 v33, 0x3727c5ac, v33")
        self.rbf(33)
        a("v_sqrt_f32 v33, v33")
        a("v_lshlrev_b32 v40, 16, v15")
        a("v_and_b32 v41, 0xffff0000, v15")
        for i in range(2):
            a(f"v_sub_f32 v{40 + i}, v{40 + i}, v32")
        self.rbf(33)
        a("v_rcp_f32 v34, v33")
        for i in range(2):
            self.rbf(40 + i)
        for i in range(2):
            a(f"v_mul_f32 v{20 + i}, v{40 + i}, v34")
        for i in range(2):
            a(f"v_fma_f32 v{40 + i}, -v{20 + i}, v33, v{40 + i}")
        for i in range(2):
            a(f"v_fmac_f32 v{20 + i}, v{40 + i}, v34")
        for i in range(2):
            a(f"v_cvt_pk_bf16_f32 v{20 + i}, v{20 + i}, v{20 + i}")
        a(f"ds_write_b64 v54, v[20:21] offset:{L_XR}")
        for t in range(9):
            a(f"ds_read_b64 v[{60 + 2 * t}:{61 + 2 * t}], v55 offset:{L_XR + 8 * t}")
        self.stamp(2)
        a("s_waitcnt lgkmcnt(0)")
        c("partial q over rows 72*split .. 72*split+71")
        self.a_frag(84, 60)
        for j in range(18):
            if j < 17:
                self.a_frag(84 + 4 * ((j + 1) % 2), 61 + j)
            else:
                a("s_nop 0")
            if j % 3 == 0:
                a(f"s_waitcnt vmcnt({18 + nw - j - 2})")
            self.mfma(80, 84 + 4 * (j % 2), 96 + 4 * j, first=(j == 0))
        a(f"s_lshl_b32 s{S_T0}, s{S_SLOT}, 9")
        a(f"s_add_u32 s{S_T0}, s{S_T0}, {WS_QX:#x}")
        a(f"s_lshl_b32 s80, s{S_HEAD}, 12")
        a(f"s_add_u32 s80, s80, {WS_QX:#x}")
        a("s_mov_b32 exec_hi, 0")
        a("s_nop 2")
        self.tag_insert(80)
        a("s_waitcnt vmcnt(0)")
        a(f"buffer_store_dwordx4 v[80:83], v18, {W}, s{S_T0} offen{'' if self.fast else ' sc1'}")
        a("s_mov_b64 exec, -1")
        a(f"buffer_load_dwordx4 v[56:59], v19, {W}, s81 offen sc1 {self.nt_poll}")
        a(f"s_mov_b32 s82, s{S_T0}")
        a(f"s_mov_b32 s{S_UNI}, 2")
        self.stamp(3)
        self.record_gather("q", 80, 512, on_retry=self.resolve_ids)
        a("v_cvt_pk_bf16_f32 v24, v20, v21")
        a("v_cvt_pk_bf16_f32 v25, v22, v23")
        a("s_mov_b32 exec_hi, 0")
        a(f"ds_write_b64 v54, v[24:25] offset:{L_QB}")
        a("s_mov_b64 exec, -1")
        self.lds_flag_set(L_FL)
        self.stamp(4)
        a("L_ids:")
        self.resolve_ids()
        a(f"s_cmp_eq_u32 s{S_UNI}, 2")
        a("s_cbranch_scc0 L_ids_ok")
        a("s_waitcnt vmcnt(0)")
        self.retry("L_ids", 2)
        a("L_ids_ok:")
        if "ffn" in self.skip:
            for i in range(200, 220):
                a(f"v_mov_b32 v{i}, 0")
            a("s_branch L_ffn_skip")
        c("partial FFN pre-activations of the head group's 144 hidden columns over the same rows")
        self.srd(S_B, S_W1, 5308416)
        for j in range(18):
            self.pace()
            a(f"buffer_load_dwordx4 v[{96 + 4 * j}:{99 + 4 * j}], v16, {B}, s79 offen {self.w_flags}")
            self.set_exec(0x00030003, 0x00030003)
            a(f"buffer_load_dwordx4 v[{168 + 4 * j}:{171 + 4 * j}], v16, {B}, s79 offen offset:256 {self.w_flags}")
            a("s_mov_b64 exec, -1")
            if j < 17:
                a("s_add_u32 s79, s79, 9216")
        for j in range(18):
            self.a_frag(84, 60 + j)
            a(f"s_waitcnt vmcnt({34 - 2 * j})")
            a("s_nop 0")
            self.mfma(80, 84, 96 + 4 * j, first=(j == 0))
            self.mfma(88, 84, 168 + 4 * j, first=(j == 0))
        a(f"s_mul_i32 s{S_T0}, s{S_SLOT}, 576")
        a(f"s_add_u32 s{S_T0}, s{S_T0}, {WS_HX:#x}")
        a(f"s_mul_i32 s80, s{S_HEAD}, 4608")
        a(f"s_add_u32 s80, s80, {WS_HX:#x}")
        a("s_mov_b32 exec_hi, 0")
        a("s_nop 2")
        self.tag_insert(80)
        self.tag_insert(88)
        self.group_store([f"buffer_store_dwordx4 v[80:83], v18, {W}, s{S_T0} offen",
                          "s_mov_b32 exec_lo, 0x00030003",
                          f"buffer_store_dwordx4 v[88:91], v18, {W}, s{S_T0} offen offset:512"])
        a("s_mov_b64 exec, -1")
        c("w2 rows of this workgroup's 18 hidden columns")
        self.srd(S_B, S_W2, 5308416)
        a("v_mul_u32_u24 v7, 5760, v8")
        a("v_add_u32 v7, v7, v9")
        a(f"s_mul_i32 s{S_T0}, s{S_SLOT}, 20736")
        self.row_frag_loads(5, 7, 96)
        self.srd(S_A, S_B1, 9216)
        a(f"s_mul_i32 s79, s{S_SLOT}, 36")
        a("v_lshlrev_b32 v19, 1, v0")
        a("v_mov_b32 v56, 0")
        a("s_mov_b64 exec, 0x3ffff")
        a(f"buffer_load_short_d16_hi v56, v19, {A}, s79 offen {self.nt_small}")
        a("s_mov_b64 exec, -1")
        self.prepoll("h", 80, 576, 8)
        self.record_gather("h", 80, 576, tail=True)
        a("s_mov_b32 exec_hi, 0")
        a(f"ds_write_b128 v6, v[20:23] offset:{L_HS}")
        a("s_mov_b32 exec_lo, 15")
        a(f"ds_write_b128 v6, v[36:39] offset:{L_HS + 512}")
        a("s_mov_b64 exec, 0x3ffff")
        a(f"s_mul_i32 s79, s{S_SPL}, 72")
        a("v_add_u32 v19, s79, v1")
        a(f"ds_read_b32 v20, v19 offset:{L_HS}")
        a("s_waitcnt lgkmcnt(0)")
        self.rbf(20)
        a("v_add_f32 v20, v20, v56")
        self.rbf(20)
        self.gelu(20, 22, 23)
        a(f"ds_write_b32 v1, v20 offset:{L_HR}")
        a("s_mov_b64 exec, -1")
        a("v_mul_u32_u24 v19, 20, v8")
        for j in range(5):
            a(f"ds_read_b32 v{60 + j}, v19 offset:{L_HR + 4 * j}")
        a("s_waitcnt lgkmcnt(0)")
        self.row_frag_project(5, 60, 96, True)
        a("L_ffn_skip:")
        self.stamp(5)
        c("wo rows of this workgroup's 16 attention columns")
        self.srd(S_B, S_WO, 0 if "wo" in self.skip else 4718592)
        a("v_mul_u32_u24 v7, 4608, v8")
        a("v_add_u32 v7, v7, v9")
        a(f"s_mul_i32 s{S_T0}, s{S_SLOT}, 18432")
        for j in range(4):
            for b in range(5):
                a(f"s_mov_b32 m0, {L_WF + (4 * b + j) * 1024 - 256 * b}")
                if b == 4:
                    self.set_exec(0x00FF00FF, 0x00FF00FF)
                else:
                    a("s_nop 0")
                self.pace()
                a(f"buffer_load_dwordx4 v7, {B}, s{S_T0} offen offset:{256 * b} {self.w_flags} lds")
            a("s_mov_b64 exec, -1")
            if j < 3:
                a(f"s_add_u32 s{S_T0}, s{S_T0}, 1152")
        for b in range(5):
            a(f"ds_write_b128 v6, v[{200 + 4 * b}:{203 + 4 * b}] offset:{L_YF + 1024 * b}")
        a(f"v_mov_b32 v20, s{S_UNI}")
        a("v_mov_b32 v21, 0")
        a(f"ds_write_b32 v21, v20 offset:{L_SCL + 16}")
        c("x + b2 for the columns this workgroup may have to finish")
        G = 8 if self.wide else 4
        self.srd(S_A, S_X, 1152)
        self.srd(S_B, S_B2, 1152)
        a(f"s_min_u32 s{S_T0}, s{S_RED}, 64")
        a(f"s_mul_i32 s{S_T0}, s{S_T0}, {8 * G}")
        a("v_lshlrev_b32 v19, 3, v0")
        a(f"s_mov_b64 exec, {(1 << G) - 1}")
        a(f"buffer_load_dwordx2 v[20:21], v19, {A}, s{S_T0} offen {self.nt_small}")
        a(f"buffer_load_dwordx2 v[22:23], v19, {B}, s{S_T0} offen {self.nt_small}")
        a("s_waitcnt vmcnt(0)")
        for src, dst in ((20, 24), (22, 28)):
            a(f"v_lshlrev_b32 v{dst}, 16, v{src}")
            a(f"v_and_b32 v{dst + 1}, 0xffff0000, v{src}")
            a(f"v_lshlrev_b32 v{dst + 2}, 16, v{src + 1}")
            a(f"v_and_b32 v{dst + 3}, 0xffff0000, v{src + 1}")
        for i in range(4):
            a(f"v_add_f32 v{24 + i}, v{24 + i}, v{28 + i}")
        a(f"ds_write_b128 v6, v[24:27] offset:{L_FN}")
        a("s_mov_b64 exec, -1")
        self.stamp(6)
        c("softmax denominator: wait for the four wave maxima, then sum exp over the workgroup's scores")
        a("v_mov_b32 v24, 0")
        self.fc_setup()
        a("L_max_wait:")
        a(f"ds_read_b128 v[28:31], v24 offset:{L_MS}")
        a("s_waitcnt lgkmcnt(0)")
        a("v_max3_u32 v20, v28, v29, v30")
        a("v_max_u32 v20, v20, v31")
        a("v_cmp_eq_u32 vcc, -1, v20")
        a("s_and_b64 vcc, vcc, exec")
        a("s_cbranch_scc0 L_max_ok")
        if self.fc:
            self.fc_step()
        self.retry("L_max_wait", 0 if self.fc else 32)
        a("L_max_ok:")
        a("v_max3_f32 v32, v28, v29, v30")
        a("v_max_f32 v32, v32, v31")
        a(f"v_mul_f32_e64 v33, -v32, s{S_L2E}")
        a("v_mov_b32 v34, 0")
        a("v_mov_b32 v25, v6")
        a(f"s_mov_b32 s{S_IT}, 0")
        a("L_den:")
        a(f"ds_read_b128 v[36:39], v25 offset:{L_SC}")
        a("v_add_u32 v25, 1024, v25")
        a("s_waitcnt lgkmcnt(0)")
        for i in range(4):
            a(f"v_lshlrev_b32 v{40 + 2 * i}, 16, v{36 + i}")
            a(f"v_and_b32 v{41 + 2 * i}, 0xffff0000, v{36 + i}")
        for i in range(40, 48):
            a(f"v_fma_f32 v{i}, v{i}, s{S_L2E}, v33")
        for i in range(40, 48):
            a(f"v_exp_f32 v{i}, v{i}")
        a("s_nop 0")
        for i in range(40, 48):
            a(f"v_add_f32 v34, v34, v{i}")
        a(f"s_add_u32 s{S_IT}, s{S_IT}, 1")
        a(f"s_cmp_lt_u32 s{S_IT}, 8")
        a("s_cbranch_scc1 L_den")
        self.allreduce("v_add_f32", 34, 20)
        c("exchange {max, sum} inside the head and derive each wave's normalisation")
        a(f"v_mov_b32 v33, s{S_TAGA}")
        a(f"v_mov_b32 v35, s{S_TAGB}")
        a(f"s_lshl_b32 s{S_T0}, s{S_SLOT}, 4")
        a(f"s_add_u32 s{S_T0}, s{S_T0}, {WS_SX:#x}")
        a("s_mov_b64 exec, 1")
        self.group_store([f"buffer_store_dwordx4 v[32:35], v6, {W}, s{S_T0} offen"])
        a("s_mov_b64 exec, -1")
        a("v_and_b32 v25, 7, v0")
        a("v_lshlrev_b32 v25, 4, v25")
        a(f"s_lshl_b32 s{S_T0}, s{S_HEAD}, 7")
        a(f"s_add_u32 s{S_T0}, s{S_T0}, {WS_SX:#x}")
        a("L_swait:")
        a(f"buffer_load_dwordx4 v[40:43], v25, {W}, s{S_T0} offen sc1 {self.nt_s}")
        a("s_waitcnt vmcnt(0)")
        a(f"v_xor_b32 v20, s{S_TAGA}, v41")
        a(f"v_xor_b32 v21, s{S_TAGB}, v43")
        a("v_or_b32 v20, v20, v21")
        a("v_cmp_ne_u32 vcc, 0, v20")
        a("s_and_b64 vcc, vcc, exec")
        a("s_cbranch_scc0 L_sdone")
        if self.fc:
            self.fc_step()
        self.retry("L_swait", 0 if self.fc else 32)
        a("L_sdone:")
        a("v_and_b32 v25, 3, v0")
        a("v_lshlrev_b32 v25, 2, v25")
        a(f"ds_read_b32 v45, v25 offset:{L_MS}")
        a("v_mov_b32 v44, v40")
        for r in (4, 2, 1):
            a("s_nop 1")
            a(f"v_max_f32_dpp v44, v44, v44 row_ror:{r} row_mask:0xf bank_mask:0xf")
        a("v_sub_f32 v40, v40, v44")
        a(f"v_mul_f32 v40, s{S_L2E}, v40")
        a("v_exp_f32 v40, v40")
        a("s_nop 0")
        a("v_mul_f32 v42, v42, v40")
        for r in (4, 2, 1):
            a("s_nop 1")
            a(f"v_add_f32_dpp v42, v42, v42 row_ror:{r} row_mask:0xf bank_mask:0xf")
        a("v_rcp_f32 v42, v42")
        a("s_waitcnt lgkmcnt(0)")
        a("v_sub_f32 v45, v45, v44")
        a(f"v_mul_f32 v45, s{S_L2E}, v45")
        a("v_exp_f32 v45, v45")
        a("s_nop 0")
        a("v_mul_f32 v45, v45, v42")
        a("s_mov_b64 exec, 15")
        a(f"ds_write_b32 v25, v45 offset:{L_SCL}")
        a("s_mov_b64 exec, -1")
        self.lds_flag_set(L_FL + 4)
        self.stamp(7)
        self.tail_fetch()
        self.tail_addresses()
        if self.fc:
            a("L_fc:")
            self.fc_step()
            a(f"s_cmp_ge_u32 s{S_OWN}, {self.fc_stop}")
            a("s_cbranch_scc1 L_fc_end")
            self.retry("L_fc")
            a("L_fc_end:")
            a("v_mov_b32 v222, 512")
            a(f"v_mov_b32 v226, {self.l_end}")
            self.fc_publish()
            a("s_mov_b64 exec, 1")
            a(f"ds_write_b32 v228, v226 offset:{L_FL + 12}")
            a("s_mov_b64 exec, -1")
        if self.warm is True or self.warm == "o":
            a(f"buffer_load_dwordx4 v[60:63], v182, {W}, s79 offen sc1 {self.nt_warm}")
            a(f"buffer_load_dwordx4 v[64:67], v182, {W}, s79 offen offset:{1024 << self.pad} sc1 {self.nt_warm}")
        self.lds_flag_wait("last", L_FL + 8, 1, 4)
        self.tail_project("h", 0x00FF00FF)
        self.stamp(9)
        self.stamp_flush()
        a("s_endpgm")

    def build(self, header):
        a = self.a
        a("s_cmp_ge_u32 s2, 256")
        a("s_cbranch_scc1 L_exit")
        a("s_load_dwordx16 s[4:19], s[0:1], 0")
        a("s_load_dwordx8 s[20:27], s[0:1], 64")
        a("s_load_dwordx2 s[28:29], s[0:1], 96")
        a("v_lshrrev_b32 v1, 6, v0")
        a("v_and_b32 v0, 63, v0")
        a(f"v_readfirstlane_b32 s{S_WAVE}, v1")
        if self.xlocal:
            a(f"s_and_b32 s{S_T0}, s2, 7")
            a(f"s_lshl_b32 s{S_T0}, s{S_T0}, 5")
            a(f"s_lshr_b32 s{S_T1}, s2, 3")
            a(f"s_add_u32 s{S_SLOT}, s{S_T0}, s{S_T1}")
        else:
            a(f"s_mov_b32 s{S_SLOT}, s2")
        self.c("slot = 8 * head + split")
        a(f"s_and_b32 s{S_SPL}, s{S_SLOT}, 7")
        a(f"s_lshr_b32 s{S_HEAD}, s{S_SLOT}, 3")
        a(f"s_sub_u32 s{S_RED}, s2, 128")
        a(f"s_mov_b32 s{S_SPIN}, 0")
        if self.stamps:
            a("v_mov_b32 v250, 0")
            self.stamp(0)
        a(f"s_cmp_eq_u32 s{S_WAVE}, 4")
        a("s_cbranch_scc1 L_helper")
        self.streamer()
        self.helper()
        self.fc_routine()
        a("L_exit:")
        body = "\n".join(x if x.endswith(":") else "    " + x for x in self.L)
        k = NAME + "_kernel"
        return f"""{header}
; @launch grid=(256,1,1) block=(320,1,1) lds={self.lds}
.amdgcn_target "amdgcn-amd-amdhsa--gfx950"
.text
.globl {k}
.p2align 8
.type {k},@function
{k}:
{body}
    s_endpgm
.section .rodata,"a"
.p2align 6
.amdhsa_kernel {k}
  .amdhsa_next_free_vgpr 256
  .amdhsa_next_free_sgpr 102
  .amdhsa_accum_offset 256
  .amdhsa_group_segment_fixed_size 0
  .amdhsa_kernarg_size 104
  .amdhsa_user_sgpr_count 2
  .amdhsa_user_sgpr_kernarg_segment_ptr 1
  .amdhsa_system_sgpr_workgroup_id_x 1
  .amdhsa_float_denorm_mode_32 3
.end_amdhsa_kernel
"""


def generate(**kw):
    ref = open(f"cdna_kernels/{NAME}.s.ref").read().splitlines()
    head = []
    for line in ref:
        if line.startswith("; Override launch"):
            break
        head.append(line)
    return Gen(**kw).build("\n".join(head))


if __name__ == "__main__":
    kw = eval("dict(" + (sys.argv[2] if len(sys.argv) > 2 else "") + ")")
    out = sys.argv[1] if len(sys.argv) > 1 else f"cdna_kernels/{NAME}.s"
    open(out, "w").write(generate(**kw))
```
